```python
import torch

def _softmax(x, axis=-1):
    return torch.softmax(x, dim=axis)
def _gelu(x):
    return torch.nn.functional.gelu(x, approximate="tanh")
def _silu(x):
    return torch.nn.functional.silu(x)
def _sigmoid(x):
    return torch.sigmoid(x)
def _layernorm(x, axis=-1, eps=1e-5):
    m = x.mean(dim=axis, keepdim=True)
    v = x.var(dim=axis, keepdim=True, unbiased=False)
    return (x - m) / torch.sqrt(v + eps)
def _scatter_add(tgt, idx, src, axis=0):
    return tgt.clone().index_add_(axis, idx, src)
def _segment_sum(src, seg, n):
    out = torch.zeros((n,) + src.shape[1:], dtype=src.dtype)
    return out.index_add_(0, seg, src)
def _pad(x, pw):
    flat = tuple(v for pair in reversed(pw) for v in pair)
    return torch.nn.functional.pad(x, flat)

kernel_name = 'sequential_preLN__grouped_kv_mqa__moe_arch_mod__prompt'

def setup_inputs():

    _w = (lambda a: (lambda t: t.to(torch.bfloat16) if t.is_floating_point() else t)(torch.as_tensor(a)))
    def _A_setup():
        B, S, D, H = 1, 2048, 640, 32
        Dh = D // H
        return {
            "x": _w((lambda *s: torch.randn(*s, dtype=torch.bfloat16) * 0.05)(B, S, D)),
            "wq": _w((lambda *s: torch.randn(*s, dtype=torch.bfloat16) * 0.05)(D, H * Dh)),
            "wk": _w((lambda *s: torch.randn(*s, dtype=torch.bfloat16) * 0.05)(D, Dh)),
            "wv": _w((lambda *s: torch.randn(*s, dtype=torch.bfloat16) * 0.05)(D, Dh)),
            "wo": _w((lambda *s: torch.randn(*s, dtype=torch.bfloat16) * 0.05)(H * Dh, D)),
        }
    _A_in = _A_setup()

    def _B_setup():
        B, S, D, F, C = 1, 2048, 640, 1728, 1
        return {
            "x": _w((lambda *s: torch.randn(*s, dtype=torch.bfloat16) * 0.05)(B, S, D)),
            "w_r": _w((lambda *s: torch.randn(*s, dtype=torch.bfloat16) * 0.05)(D)),
            "w_gate": _w((lambda *s: torch.randn(*s, dtype=torch.bfloat16) * 0.05)(D, F)),
            "w_up": _w((lambda *s: torch.randn(*s, dtype=torch.bfloat16) * 0.05)(D, F)),
            "w_down": _w((lambda *s: torch.randn(*s, dtype=torch.bfloat16) * 0.05)(F, D)),
        }
    _B_in = _B_setup()

    return {
        "A_x": _A_in["x"],
        "A_wq": _A_in["wq"],
        "A_wk": _A_in["wk"],
        "A_wv": _A_in["wv"],
        "A_wo": _A_in["wo"],
        "B_x": _B_in["x"],
        "B_w_r": _B_in["w_r"],
        "B_w_gate": _B_in["w_gate"],
        "B_w_up": _B_in["w_up"],
        "B_w_down": _B_in["w_down"],
    }

def reference(A_x, A_wq, A_wk, A_wv, A_wo, B_x, B_w_r, B_w_gate, B_w_up, B_w_down):
    def _A_ref(x, wq, wk, wv, wo):
        B, S, D = x.shape
        H = 32
        Dh = D // H
        q = (lambda x, *d: x.permute(*d))((x @ wq).reshape(B, S, H, Dh), 0, 2, 1, 3)
        k = x @ wk
        v = x @ wv
        scores = torch.einsum("bhqd,bkd->bhqk", q, k) * (Dh ** -0.5)
        p = _softmax(scores, axis=-1)
        o = torch.einsum("bhqk,bkd->bhqd", p, v)
        return (lambda x, *d: x.permute(*d))(o, 0, 2, 1, 3).reshape(B, S, H * Dh) @ wo

    def _B_ref(x, w_r, w_gate, w_up, w_down):
        B, S, D = x.shape
        C = 1
        r = x @ w_r
        idx = torch.argsort(-r, axis=-1)[:, :C]
        idx_e = (lambda x, n, axis: torch.repeat_interleave(x, n, dim=axis))(idx.reshape(B, C, 1), D, axis=2)
        x_sel = (lambda x, i, axis: torch.take_along_dim(x, i, dim=axis))(x, idx_e, axis=1)
        g = _silu(x_sel @ w_gate)
        u = x_sel @ w_up
        y = (g * u) @ w_down
        r_sel = _sigmoid((lambda x, i, axis: torch.take_along_dim(x, i, dim=axis))(r, idx, axis=1))
        y = y * r_sel.reshape(B, C, 1)
        b_off = (torch.arange(B) * S).reshape(B, 1)
        flat_idx = (idx + b_off).reshape(B * C)
        zero = (x * 0.0).reshape(B * S, D)
        upd = _scatter_add(zero, flat_idx, y.reshape(B * C, D), axis=0)
        return x + upd.reshape(B, S, D)

    x = A_x
    h = x + _A_ref(_layernorm(x, axis=-1), A_wq, A_wk, A_wv, A_wo)
    h2 = h + _B_ref(_layernorm(h, axis=-1), B_w_r, B_w_gate, B_w_up, B_w_down)
    return h2
```

```python
import math

S, D, H, DH, F = 2048, 640, 32, 20, 1728
KA_X, KA_WQ, KA_WK, KA_WV, KA_WO, KA_BX, KA_WR, KA_WG, KA_WU, KA_WD, KA_OUT, KA_DBG, KA_WS = [8*i for i in range(13)]
WS_Q   = 0x000000
WS_KV  = 0x280000
WS_KN  = 0x2A8000
WS_ST  = 0x2A9000
WS_O   = 0x300000
WS_H   = 0x580000
WS_GU  = 0x800000
WS_SEL = 0x810000
WS_END = 0x820000
ACT_BYTES = S*D*2

def f32bits(x):
    import struct
    return struct.unpack("<I", struct.pack("<f", x))[0]

class Asm:
    def __init__(self):
        self.lines = []
        self.nlabel = 0
    def __call__(self, s):
        for l in s.strip("\n").split("\n"):
            self.lines.append("    " + l.strip())
    def label(self, name):
        self.lines.append(name + ":")
    def newlabel(self, p="L"):
        self.nlabel += 1
        return "%s_%d" % (p, self.nlabel)
    def comment(self, s):
        self.lines.append("    ; " + s)
    def text(self):
        return "\n".join(self.lines) + "\n"

def vr(a, n=1):
    return "v%d" % a if n == 1 else "v[%d:%d]" % (a, a+n-1)
def sr(a, n=1):
    return "s%d" % a if n == 1 else "s[%d:%d]" % (a, a+n-1)

def srd(A, d, base, nbytes):
    A("s_mov_b32 s%d, s%d" % (d, base))
    A("s_and_b32 s%d, s%d, 0xffff" % (d+1, base+1))
    A("s_mov_b32 s%d, 0x%x" % (d+2, nbytes))
    A("s_mov_b32 s%d, 0x00020000" % (d+3))

def kernel_header(name):
    return """.text
.globl %s
.p2align 8
.type %s,@function
%s:
""" % (name, name, name)

def kernel_desc(name, vgpr, sgpr):
    acc = ((vgpr + 3)//4)*4
    return """.section .rodata,"a"
.p2align 6
.amdhsa_kernel %s
  .amdhsa_next_free_vgpr %d
  .amdhsa_next_free_sgpr %d
  .amdhsa_accum_offset %d
  .amdhsa_group_segment_fixed_size 0
  .amdhsa_kernarg_size 104
  .amdhsa_user_sgpr_count 2
  .amdhsa_user_sgpr_kernarg_segment_ptr 1
  .amdhsa_system_sgpr_workgroup_id_x 1
.end_amdhsa_kernel
""" % (name, vgpr, sgpr, acc)

def reduce4groups(A, v, t0, t1):
    A("v_mov_b32 v%d, v%d" % (t0, v))
    A("v_mov_b32 v%d, v%d" % (t1, v))
    A("s_nop 1")
    A("v_permlane32_swap_b32 v%d, v%d" % (t0, t1))
    A("s_nop 1")
    A("v_add_f32 v%d, v%d, v%d" % (v, t0, t1))
    A("v_mov_b32 v%d, v%d" % (t0, v))
    A("v_mov_b32 v%d, v%d" % (t1, v))
    A("s_nop 1")
    A("v_permlane16_swap_b32 v%d, v%d" % (t0, t1))
    A("s_nop 1")
    A("v_add_f32 v%d, v%d, v%d" % (v, t0, t1))
```

```python
from common import *

LDS_ATTN = 163840
THR2 = 2200.0

def wave_max(A, v, t0, t1):
    for ror in (8, 4, 2, 1):
        A("s_nop 1")
        A("v_max_f32_dpp v%d, v%d, v%d row_ror:%d row_mask:0xf bank_mask:0xf" % (v, v, v, ror))
    for sw in ("v_permlane16_swap_b32", "v_permlane32_swap_b32"):
        A("v_mov_b32 v%d, v%d" % (t0, v))
        A("v_mov_b32 v%d, v%d" % (t1, v))
        A("s_nop 1")
        A("%s v%d, v%d" % (sw, t0, t1))
        A("s_nop 1")
        A("v_max_f32 v%d, v%d, v%d" % (v, t0, t1))

def gen_attn(name, force_slow=False):
    A = Asm()
    L_end = name + "_end"
    Q1 = [16, 24]; Q2 = [20, 28]
    KL = [32, 40]; KH = [36, 44]; VF = [48, 56]
    SS = [[64, 80], [96, 112]]
    P = [128, 136]; O = [144, 160]; M = [176, 177]; T = 178
    A("s_cmp_ge_u32 s2, 256")
    A("s_cbranch_scc1 %s" % L_end)
    A("s_load_dwordx2 s[4:5], s[0:1], %d" % KA_WS)
    A("v_and_b32 v1, 63, v0")
    A("v_and_b32 v2, 31, v0")
    A("v_lshrrev_b32 v3, 5, v1")
    A("v_lshrrev_b32 v7, 6, v0")
    A("s_nop 0")
    A("v_readfirstlane_b32 s3, v7")
    A("s_mov_b32 s14, 0x000fffff")
    A("s_mov_b32 s15, 0x000fffff")
    A("s_mov_b32 s18, 0x07060302")
    A("s_waitcnt lgkmcnt(0)")
    srd(A, 8, 4, WS_END)
    A("s_and_b32 s12, s3, 3")
    A("s_lshr_b32 s13, s3, 2")
    A("v_lshlrev_b32 v7, 4, v1")
    A("v_add_u32 v7, 0x%x, v7" % WS_KV)
    A("s_lshl_b32 s16, s3, 10")
    for i in range(20):
        A("s_add_u32 s17, s16, %d" % ((i >> 1)*8192 + (i & 1)*81920))
        A("s_mov_b32 m0, s17")
        A("s_nop 0")
        A("buffer_load_dwordx4 v7, s[8:11], s17 offen lds")
    A("s_lshl_b32 s19, s2, 3")
    A("s_lshl_b32 s17, s12, 1")
    A("s_add_u32 s19, s19, s17")
    A("s_mul_i32 s19, s19, 1280")
    A("v_mul_u32_u24 v8, 40, v2")
    A("v_lshl_add_u32 v8, v3, 4, v8")
    A("v_add_u32 v8, s19, v8")
    for X in range(2):
        for r in range(4):
            A("v_mov_b32 v%d, 0" % (Q2[X]+r))
    for X in range(2):
        A("buffer_load_dwordx4 %s, v8, s[8:11], 0 offen offset:%d" % (vr(Q1[X], 4), 1280*X))
    A("s_mov_b32 s20, -1")
    A("s_mov_b32 s21, 0")
    A("s_mov_b64 exec, s[20:21]")
    for X in range(2):
        A("buffer_load_dwordx2 %s, v8, s[8:11], 0 offen offset:%d" % (vr(Q2[X], 2), 1280*X+32))
    A("s_mov_b64 exec, -1")
    A("v_lshlrev_b32 v9, 3, v1")
    A("v_add_u32 v9, 0x%x, v9" % WS_KN)
    A("buffer_load_dwordx2 v[10:11], v9, s[8:11], 0 offen")
    for X in range(2):
        for r in range(16):
            A("v_mov_b32 v%d, 0" % (O[X]+r))
        A("v_mov_b32 v%d, 0" % M[X])
    for b in range(2):
        A("v_mov_b32 v%d, 0" % (KH[b]+2))
        A("v_mov_b32 v%d, 0" % (KH[b]+3))
    A("v_cmp_eq_u32 vcc, 20, v2")
    A("v_mov_b32 v12, 0x3f803f80")
    A("s_nop 1")
    A("v_cndmask_b32 v12, 0, v12, vcc")
    for b in range(2):
        for r in range(8):
            A("v_mov_b32 v%d, v12" % (VF[b]+r))
    A("s_mul_i32 s17, s13, 81920")
    A("v_lshlrev_b32 v4, 4, v1")
    A("v_add_u32 v4, s17, v4")
    A("v_lshlrev_b32 v5, 3, v2")
    A("v_add_u32 v5, s17, v5")
    A("v_min_u32 v6, 19, v2")
    A("v_mul_u32_u24 v12, 20, v3")
    A("v_add_u32 v6, v6, v12")
    A("v_lshlrev_b32 v6, 4, v6")
    A("v_add_u32 v6, s17, v6")
    A("s_waitcnt vmcnt(0)")
    A("v_max_f32 v10, v10, v11")
    wave_max(A, 10, 12, 13)
    for X in range(2):
        A("v_mov_b32 v%d, 0" % (12+X))
    for X in range(2):
        for r in range(4):
            A("v_dot2c_f32_bf16 v%d, v%d, v%d" % (12+X, Q1[X]+r, Q1[X]+r))
        for r in range(2):
            A("v_dot2c_f32_bf16 v%d, v%d, v%d" % (12+X, Q2[X]+r, Q2[X]+r))
    A("s_nop 3")
    A("v_max_f32 v12, v12, v13")
    A("v_mov_b32 v13, v12")
    A("v_mov_b32 v14, v12")
    A("s_nop 1")
    A("v_permlane32_swap_b32 v13, v14")
    A("s_nop 1")
    A("v_add_f32 v12, v13, v14")
    A("v_mul_f32 v12, v12, v10")
    A("v_mov_b32 v13, 0x%x" % f32bits(THR2))
    A("v_cmp_nle_f32 vcc, v12, v13")
    A("s_barrier")
    L_slow = name + "_slow"; L_merge = name + "_merge"
    if force_slow:
        A("s_branch %s" % L_slow)
    else:
        A("s_cmp_lg_u64 vcc, 0")
        A("s_cbranch_scc1 %s" % L_slow)

    def rdK(b, off):
        A("ds_read_b128 %s, v4 offset:%d" % (vr(KL[b], 4), off))
        A("ds_read_b64 %s, v5 offset:%d" % (vr(KH[b], 2), off+1024))
    def rdV(b, off):
        A("s_mov_b64 exec, s[14:15]")
        A("ds_read_b128 %s, v6 offset:%d" % (vr(VF[b], 4), off+1280))
        A("ds_read_b128 %s, v6 offset:%d" % (vr(VF[b]+4, 4), off+1920))
        A("s_mov_b64 exec, -1")
    def qk(dst, kb, X, part):
        if part == 0:
            A("v_mfma_f32_32x32x16_bf16 %s, %s, %s, 0" % (vr(dst, 16), vr(KL[kb], 4), vr(Q1[X], 4)))
        else:
            A("v_mfma_f32_32x32x16_bf16 %s, %s, %s, %s" % (vr(dst, 16), vr(KH[kb], 4), vr(Q2[X], 4), vr(dst, 16)))
    def pv(X, vb, m):
        A("v_mfma_f32_32x32x16_bf16 %s, %s, %s, %s" % (vr(O[X], 16), vr(VF[vb]+4*m, 4), vr(P[X]+4*m, 4), vr(O[X], 16)))
    def exps(s, lo, hi):
        for r in range(lo, hi):
            A("v_exp_f32 v%d, v%d" % (s+r, s+r))
    def perm(X, s, i):
        A("v_perm_b32 v%d, v%d, v%d, s18" % (P[X]+i, s+2*i+1, s+2*i))

    rdK(0, 0)
    A("s_waitcnt lgkmcnt(0)")
    for X in range(2):
        qk(SS[0][X], 0, X, 0); qk(SS[0][X], 0, X, 1)
    rdK(1, 2560)
    rdV(0, 0)
    A("s_mov_b32 s16, 0")
    L_loop = name + "_loop"
    A.label(L_loop)
    for u in range(4):
        b = u & 1
        sa, sb = SS[b]
        na, nb = SS[1-b]
        A("s_waitcnt lgkmcnt(0)")
        rdK(b, (u+2)*2560)
        rdV(1-b, (u+1)*2560)
        qk(na, 1-b, 0, 0)
        exps(sa, 0, 4)
        qk(na, 1-b, 0, 1)
        exps(sa, 4, 8); perm(0, sa, 0); perm(0, sa, 1)
        qk(nb, 1-b, 1, 0)
        exps(sa, 8, 12); perm(0, sa, 2); perm(0, sa, 3)
        qk(nb, 1-b, 1, 1)
        exps(sa, 12, 16); perm(0, sa, 4); perm(0, sa, 5)
        exps(sb, 0, 2); perm(0, sa, 6); perm(0, sa, 7)
        pv(0, b, 0)
        exps(sb, 2, 6)
        pv(0, b, 1)
        exps(sb, 6, 10); perm(1, sb, 0); perm(1, sb, 1); perm(1, sb, 2); perm(1, sb, 3)
        exps(sb, 10, 13)
        pv(1, b, 0)
        exps(sb, 13, 16); perm(1, sb, 4); perm(1, sb, 5); perm(1, sb, 6); perm(1, sb, 7)
        if u == 3:
            A("v_add_u32 v4, 10240, v4")
            A("v_add_u32 v5, 10240, v5")
            A("v_add_u32 v6, 10240, v6")
            A("s_add_u32 s16, s16, 1")
            A("s_cmp_lt_u32 s16, 8")
        else:
            A("s_nop 1")
        pv(1, b, 1)
    A("s_cbranch_scc1 %s" % L_loop)
    A("s_branch %s" % L_merge)

    A.label(L_slow)
    for X in range(2):
        A("v_mov_b32 v%d, 0x%x" % (M[X], f32bits(-3.0e38)))
    A("s_mov_b32 s16, 0")
    L_sl = name + "_sloop"
    A.label(L_sl)
    rdK(0, 0)
    rdV(0, 0)
    A("s_waitcnt lgkmcnt(0)")
    for X in range(2):
        qk(SS[0][X], 0, X, 0); qk(SS[0][X], 0, X, 1)
    A("s_nop 7"); A("s_nop 7")
    for X in range(2):
        s = SS[0][X]
        A("v_max3_f32 v%d, v%d, v%d, v%d" % (T, s, s+1, s+2))
        for r in range(3, 15, 2):
            A("v_max3_f32 v%d, v%d, v%d, v%d" % (T, T, s+r, s+r+1))
        A("v_max_f32 v%d, v%d, v%d" % (T, T, s+15))
        A("v_mov_b32 v%d, v%d" % (T+1, T))
        A("v_mov_b32 v%d, v%d" % (T+2, T))
        A("s_nop 1")
        A("v_permlane32_swap_b32 v%d, v%d" % (T+1, T+2))
        A("s_nop 1")
        A("v_max3_f32 v%d, v%d, v%d, v%d" % (T, T+1, T+2, M[X]))
        A("v_sub_f32 v%d, v%d, v%d" % (T+1, M[X], T))
        A("v_exp_f32 v%d, v%d" % (T+1, T+1))
        A("v_mov_b32 v%d, v%d" % (M[X], T))
        for r in range(16):
            A("v_mul_f32 v%d, v%d, v%d" % (O[X]+r, T+1, O[X]+r))
        for r in range(16):
            A("v_sub_f32 v%d, v%d, v%d" % (s+r, s+r, T))
        exps(s, 0, 16)
        A("s_nop 0")
        for i in range(8):
            perm(X, s, i)
        A("s_nop 1")
        pv(X, 0, 0); pv(X, 0, 1)
    A("s_nop 7"); A("s_nop 7")
    A("v_add_u32 v4, 2560, v4")
    A("v_add_u32 v5, 2560, v5")
    A("v_add_u32 v6, 2560, v6")
    A("s_add_u32 s16, s16, 1")
    A("s_cmp_lt_u32 s16, 32")
    A("s_cbranch_scc1 %s" % L_sl)

    A.label(L_merge)
    A("s_nop 7"); A("s_nop 7")
    A("s_waitcnt lgkmcnt(0)")
    A("s_barrier")
    A("s_lshl_b32 s17, s3, 12")
    A("v_lshlrev_b32 v4, 4, v1")
    A("v_add_u32 v5, s17, v4")
    A("s_xor_b32 s17, s3, 4")
    A("s_lshl_b32 s17, s17, 12")
    A("v_add_u32 v6, s17, v4")
    A("v_lshlrev_b32 v7, 2, v1")
    A("v_add_u32 v8, s17, v7")
    A("s_lshl_b32 s17, s3, 12")
    A("v_add_u32 v7, s17, v7")
    L_k1 = name + "_mk1"
    A("s_cmp_eq_u32 s13, 1")
    A("s_cbranch_scc1 %s" % L_k1)
    for keep in range(2):
        send = 1-keep
        if keep == 1:
            A.label(L_k1)
        for q in range(3):
            A("ds_write_b128 v5, %s offset:%d" % (vr(O[send]+4*q, 4), 1024*q))
        A("ds_write_b32 v7, v%d offset:3072" % M[send])
        A("s_waitcnt lgkmcnt(0)")
        A("s_barrier")
        for q in range(3):
            A("ds_read_b128 %s, v6 offset:%d" % (vr(O[send]+4*q, 4), 1024*q))
        A("ds_read_b32 v%d, v8 offset:3072" % M[send])
        A("s_waitcnt lgkmcnt(0)")
        A("v_max_f32 v%d, v%d, v%d" % (T, M[keep], M[send]))
        A("v_sub_f32 v%d, v%d, v%d" % (T+1, M[keep], T))
        A("v_sub_f32 v%d, v%d, v%d" % (T+2, M[send], T))
        A("v_exp_f32 v%d, v%d" % (T+1, T+1))
        A("v_exp_f32 v%d, v%d" % (T+2, T+2))
        A("s_nop 0")
        for r in range(12):
            A("v_mul_f32 v%d, v%d, v%d" % (O[keep]+r, T+1, O[keep]+r))
        for r in range(12):
            A("v_fma_f32 v%d, v%d, v%d, v%d" % (O[keep]+r, T+2, O[send]+r, O[keep]+r))
        A("v_mov_b32 v%d, v%d" % (T+1, O[keep]+8))
        A("v_mov_b32 v%d, v%d" % (T+2, O[keep]+8))
        A("s_nop 1")
        A("v_permlane32_swap_b32 v%d, v%d" % (T+1, T+2))
        A("s_nop 1")
        A("v_rcp_f32 v%d, v%d" % (T+2, T+2))
        A("s_nop 0")
        for r in range(12):
            A("v_mul_f32 v%d, v%d, v%d" % (O[keep]+r, T+2, O[keep]+r))
        for i in range(6):
            A("v_cvt_pk_bf16_f32 v%d, v%d, v%d" % (T+4+i, O[keep]+2*i, O[keep]+2*i+1))
        A("v_mul_u32_u24 v9, 40, v2")
        A("v_lshl_add_u32 v9, v3, 3, v9")
        A("v_add_u32 v9, s19, v9")
        A("v_add_u32 v9, 0x%x, v9" % (WS_O + 1280*keep))
        A("buffer_store_dwordx2 %s, v9, s[8:11], 0 offen" % vr(T+4, 2))
        A("buffer_store_dwordx2 %s, v9, s[8:11], 0 offen offset:16" % vr(T+6, 2))
        A("s_mov_b64 exec, s[20:21]")
        A("buffer_store_dwordx2 %s, v9, s[8:11], 0 offen offset:32" % vr(T+8, 2))
        A("s_mov_b64 exec, -1")
        if keep == 0:
            A("s_branch %s" % L_end)
    A.label(L_end)
    A("s_endpgm")
    return kernel_header(name) + A.text() + kernel_desc(name, 192, 32)
```

```python
from common import *

LDS_W_PITCH = 192
LDS_KVB = 124800
LDS_CSB = 153472
LDS_GEMM = 155264
QSCALE = (20.0 ** -0.5) * math.log2(math.e)

def gen_gemm(mode, name):
    A = Asm()
    qkv = (mode == 'qkv')
    L_end = name + "_end"
    XF = 16; WST = 96; KVST = 200; ACC = 228; ACCKV = 248
    CS = 96; CSKV = 116; AF = 124; NB = 6; ONES = 156; ST = 160; T = 168
    XR = 200; WR = 210
    A("s_cmp_ge_u32 s2, 256")
    A("s_cbranch_scc1 %s" % L_end)
    if qkv:
        A("s_load_dwordx2 s[4:5], s[0:1], %d" % KA_X)
        A("s_load_dwordx2 s[6:7], s[0:1], %d" % KA_WQ)
        A("s_load_dwordx2 s[8:9], s[0:1], %d" % KA_WK)
        A("s_load_dwordx2 s[10:11], s[0:1], %d" % KA_WV)
    else:
        A("s_load_dwordx2 s[6:7], s[0:1], %d" % KA_WO)
        A("s_load_dwordx2 s[8:9], s[0:1], %d" % KA_X)
        A("s_load_dwordx2 s[10:11], s[0:1], %d" % KA_WR)
    A("s_load_dwordx2 s[12:13], s[0:1], %d" % KA_WS)
    A("s_lshr_b32 s36, s2, 3")
    A("s_and_b32 s37, s2, 7")
    A("v_and_b32 v1, 63, v0")
    A("v_and_b32 v2, 15, v0")
    A("v_lshrrev_b32 v3, 4, v1")
    A("v_lshrrev_b32 v5, 6, v0")
    A("s_nop 0")
    A("v_readfirstlane_b32 s3, v5")
    A("s_waitcnt lgkmcnt(0)")
    srd(A, 28, 12, WS_END)
    if qkv:
        srd(A, 16, 4, ACT_BYTES)
    else:
        srd(A, 16, 12, WS_END)
    srd(A, 20, 6, D*D*2)
    if qkv:
        A("s_cmp_eq_u32 s37, 0")
        A("s_cselect_b32 s24, s8, s10")
        A("s_cselect_b32 s25, s9, s11")
        A("s_and_b32 s25, s25, 0xffff")
        A("s_mov_b32 s26, %d" % (D*DH*2))
        A("s_mov_b32 s27, 0x00020000")
    else:
        srd(A, 24, 8, ACT_BYTES)
        srd(A, 32, 10, D*2)
    A("s_lshl_b32 s38, s36, 6")
    A("s_lshl_b32 s39, s3, 4")
    A("s_add_u32 s38, s38, s39")
    A("v_add_u32 v6, s38, v2")
    A("v_mul_u32_u24 v4, 1280, v6")
    A("v_lshl_add_u32 v4, v3, 4, v4")
    if not qkv:
        A("v_add_u32 v4, 0x%x, v4" % WS_O)
    for s in range(20):
        A("buffer_load_dwordx4 %s, v4, s[16:19], 0 offen offset:%d" % (vr(XF+4*s, 4), 64*s))
    A("v_min_u32 v7, 249, v0")
    A("v_mul_u32_u24 v8, 0x199a, v7")
    A("v_lshrrev_b32 v8, 16, v8")
    A("v_mul_u32_u24 v9, 10, v8")
    A("v_sub_u32 v9, v7, v9")
    A("v_lshlrev_b32 v9, 4, v9")
    A("v_mul_u32_u24 v10, 1280, v8")
    A("v_add_u32 v10, v10, v9")
    A("s_mul_i32 s39, s37, 160")
    A("v_add_u32 v10, s39, v10")
    for i in range(26):
        A("s_mov_b32 s40, %d" % (i*25*1280))
        A("buffer_load_dwordx4 %s, v10, s[20:23], s40 offen" % vr(WST+4*i, 4))
    L_nokv = A.newlabel(name+"_nokvld")
    if qkv:
        A("s_cmp_ge_u32 s37, 2")
        A("s_cbranch_scc1 %s" % L_nokv)
        A("v_lshlrev_b32 v11, 4, v0")
        for i in range(7):
            A("s_mov_b32 s40, %d" % (i*4096))
            A("buffer_load_dwordx4 %s, v11, s[24:27], s40 offen" % vr(KVST+4*i, 4))
        A.label(L_nokv)
    else:
        A("v_mul_u32_u24 v11, 1280, v6")
        A("s_mul_i32 s39, s37, 160")
        A("v_lshl_add_u32 v12, v3, 3, s39")
        A("v_add_u32 v11, v11, v12")
        for j in range(5):
            A("buffer_load_dwordx2 %s, v11, s[24:27], 0 offen offset:%d" % (vr(XR+2*j, 2), 32*j))
        for j in range(5):
            A("buffer_load_dwordx2 %s, v12, s[32:35], 0 offen offset:%d" % (vr(WR+2*j, 2), 32*j))
    A("v_lshrrev_b32 v13, 2, v2")
    A("v_and_b32 v14, 3, v2")
    A("v_lshl_add_u32 v13, v3, 3, v13")
    A("v_mul_u32_u24 v15, 40, v13")
    A("v_lshl_add_u32 v15, v14, 3, v15")
    A("v_add_u32 v15, %d, v15" % LDS_KVB)
    A("v_mul_u32_u24 v13, 192, v13")
    A("v_lshl_add_u32 v13, v14, 3, v13")
    A("v_and_b32 v14, 1, v3")
    A("v_lshl_add_u32 v13, v14, 5, v13")
    A("v_add_u32 v14, 61440, v13")
    A("s_waitcnt vmcnt(0)")
    for i in range(26):
        if i == 0:
            A("v_mov_b32 v5, v8")
        else:
            A("v_add_u32 v5, %d, v8" % (25*i))
        A("v_bfe_u32 v7, v5, 3, 1")
        A("v_mul_u32_u24 v5, 192, v5")
        A("v_lshl_add_u32 v5, v7, 5, v5")
        A("v_add_u32 v5, v5, v9")
        A("ds_write_b128 v5, %s" % vr(WST+4*i, 4))
    if qkv:
        L2 = A.newlabel(name+"_nokvst")
        A("s_cmp_ge_u32 s37, 2")
        A("s_cbranch_scc1 %s" % L2)
        A("v_lshlrev_b32 v11, 4, v0")
        A("v_add_u32 v11, %d, v11" % LDS_KVB)
        for i in range(7):
            A("ds_write_b128 v11, %s offset:%d" % (vr(KVST+4*i, 4), 4096*i))
        A.label(L2)
    A("s_waitcnt lgkmcnt(0)")
    A("s_barrier")
    for i in range(4):
        A("v_mov_b32 v%d, 0x3f803f80" % (ONES+i))
    if qkv:
        for i in range(4):
            A("v_mov_b32 v%d, 0" % (ST+i))

    def trread(f, buf, base_regs, ntile, pitch_step, sec_step, tile_step):
        s, j = divmod(f, ntile)
        off = pitch_step*s + tile_step*j
        b = base_regs[0]
        if off + sec_step > 65535 - 0 and len(base_regs) > 1:
            pass
        if len(base_regs) > 1 and s >= 10:
            b = base_regs[1]; off -= 61440
        A("ds_read_b64_tr_b16 %s, v%d offset:%d" % (vr(buf, 2), b, off))
        A("ds_read_b64_tr_b16 %s, v%d offset:%d" % (vr(buf+2, 2), b, off+sec_step))

    def gemm_loop(ntile, acc, cs, base_regs, pitch_step, sec_step, tile_step, with_stats, tag):
        nf = 20*ntile
        P = 4
        for f in range(P):
            trread(f, AF+4*(f % NB), base_regs, ntile, pitch_step, sec_step, tile_step)
        dots = []
        if with_stats:
            for r in range(80):
                dots.append("v_dot2c_f32_bf16 v%d, v%d, v%d" % (ST + (r & 1), XF+r, ONES))
                dots.append("v_dot2c_f32_bf16 v%d, v%d, v%d" % (ST + 2 + (r & 1), XF+r, XF+r))
        di = 0
        for grp in range(4):
            Lno = A.newlabel(name+"_"+tag+"_nocs"); Lnx = A.newlabel(name+"_"+tag+"_nx")
            use_cs = cs is not None
            variants = [True, False] if use_cs else [False]
            if use_cs:
                A("s_cmp_lg_u32 s3, %d" % grp)
                A("s_cbranch_scc1 %s" % Lno)
            di0 = di
            for vi, docs in enumerate(variants):
                di = di0
                if vi == 1:
                    A.label(Lno)
                for f in range(grp*5*ntile, (grp+1)*5*ntile):
                    s, j = divmod(f, ntile)
                    if f + P < nf:
                        trread(f+P, AF+4*((f+P) % NB), base_regs, ntile, pitch_step, sec_step, tile_step)
                    rem = min(P, nf-1-f)
                    A("s_waitcnt lgkmcnt(%d)" % (2*rem))
                    c = "0" if s == 0 else vr(acc+4*j, 4)
                    A("v_mfma_f32_16x16x32_bf16 %s, %s, %s, %s" % (vr(acc+4*j, 4), vr(AF+4*(f % NB), 4), vr(XF+4*s, 4), c))
                    if docs:
                        c = "0" if s == grp*5 else vr(cs+4*j, 4)
                        A("v_mfma_f32_16x16x32_bf16 %s, %s, %s, %s" % (vr(cs+4*j, 4), vr(AF+4*(f % NB), 4), vr(ONES, 4), c))
                    for _ in range(2):
                        if di < len(dots):
                            A(dots[di]); di += 1
                if use_cs and vi == 0:
                    A("s_branch %s" % Lnx)
            if use_cs:
                A.label(Lnx)
    gemm_loop(5, ACC, CS if qkv else None, [13, 14], 6144, 768, 32, qkv, "m")
    if qkv:
        Lk = A.newlabel(name+"_nokvmm")
        A("s_cmp_ge_u32 s37, 2")
        A("s_cbranch_scc1 %s" % Lk)
        gemm_loop(2, ACCKV, CSKV, [15], 1280, 160, 32, False, "kv")
        A.label(Lk)
    A("s_nop 7")
    A("s_nop 3")
    if qkv:
        A("s_mul_i32 s39, s3, %d" % (7*64))
        A("v_lshlrev_b32 v5, 4, v3")
        A("v_add_u32 v5, s39, v5")
        A("v_add_u32 v5, %d, v5" % LDS_CSB)
        for j in range(7):
            A("ds_write_b128 v5, %s offset:%d" % (vr(CS+4*j, 4), 64*j))
        A("s_waitcnt lgkmcnt(0)")
        A("s_barrier")
        A("v_lshlrev_b32 v5, 4, v3")
        A("v_add_u32 v5, %d, v5" % LDS_CSB)
        A("v_add_f32 v%d, v%d, v%d" % (ST, ST, ST+1))
        A("v_add_f32 v%d, v%d, v%d" % (ST+2, ST+2, ST+3))
        reduce4groups(A, ST, T, T+1)
        reduce4groups(A, ST+2, T, T+1)
        A("v_mul_f32 v%d, 0x%x, v%d" % (ST, f32bits(1.0/640), ST))
        A("v_mul_f32 v%d, 0x%x, v%d" % (ST+2, f32bits(1.0/640), ST+2))
        A("v_fma_f32 v%d, -v%d, v%d, v%d" % (ST+2, ST, ST, ST+2))
        A("v_max_f32 v%d, 0, v%d" % (ST+2, ST+2))
        A("v_add_f32 v%d, 0x%x, v%d" % (ST+2, f32bits(1e-5), ST+2))
        A("v_rsq_f32 v%d, v%d" % (ST+1, ST+2))
        A("s_nop 0")
        A("v_mul_f32 v%d, 0x%x, v%d" % (ST+3, f32bits(QSCALE), ST+1))
        A("v_mul_u32_u24 v7, 1280, v6")
        A("s_mul_i32 s39, s37, 160")
        A("v_lshl_add_u32 v8, v3, 3, s39")
        A("v_add_u32 v7, v7, v8")
        def load_cs(j):
            for w in range(4):
                A("ds_read_b128 %s, v5 offset:%d" % (vr(T+4*w, 4), (w*7+j)*64))
            A("s_waitcnt lgkmcnt(0)")
            for r in range(4):
                A("v_add_f32 v%d, v%d, v%d" % (T+r, T+r, T+4+r))
                A("v_add_f32 v%d, v%d, v%d" % (T+8+r, T+8+r, T+12+r))
            for r in range(4):
                A("v_add_f32 v%d, v%d, v%d" % (T+r, T+r, T+8+r))
        def normalize(acc, scale_reg):
            for r in range(4):
                A("v_fma_f32 v%d, -v%d, v%d, v%d" % (acc+r, ST, T+r, acc+r))
            for r in range(4):
                A("v_mul_f32 v%d, v%d, v%d" % (acc+r, scale_reg, acc+r))
        for j in range(5):
            load_cs(j)
            normalize(ACC+4*j, ST+3)
            A("v_cvt_pk_bf16_f32 v%d, v%d, v%d" % (T+16, ACC+4*j, ACC+4*j+1))
            A("v_cvt_pk_bf16_f32 v%d, v%d, v%d" % (T+17, ACC+4*j+2, ACC+4*j+3))
            A("buffer_store_dwordx2 %s, v7, s[28:31], 0 offen offset:%d" % (vr(T+16, 2), 32*j))
            A("s_nop 1")
        Lv = A.newlabel(name+"_v"); Lz = A.newlabel(name+"_z")
        A("s_cmp_ge_u32 s37, 2")
        A("s_cbranch_scc1 %s" % Lz)
        load_cs(5); normalize(ACCKV, ST+1)
        load_cs(6); normalize(ACCKV+4, ST+1)
        A("v_lshrrev_b32 v8, 5, v6")
        A("v_mul_u32_u24 v8, 2560, v8")
        A("v_add_u32 v8, 0x%x, v8" % WS_KV)
        A("v_and_b32 v9, 31, v6")
        A("s_cmp_eq_u32 s37, 1")
        A("s_cbranch_scc1 %s" % Lv)
        A("v_cvt_pk_bf16_f32 v%d, v%d, v%d" % (T+16, ACCKV, ACCKV+1))
        A("v_cvt_pk_bf16_f32 v%d, v%d, v%d" % (T+17, ACCKV+2, ACCKV+3))
        A("v_cvt_pk_bf16_f32 v%d, v%d, v%d" % (T+18, ACCKV+4, ACCKV+5))
        A("v_cvt_pk_bf16_f32 v%d, v%d, v%d" % (T+19, ACCKV+6, ACCKV+7))
        A("v_lshrrev_b32 v10, 1, v3")
        A("v_lshl_add_u32 v10, v10, 5, v9")
        A("v_lshlrev_b32 v10, 4, v10")
        A("v_and_b32 v11, 1, v3")
        A("v_lshl_add_u32 v10, v11, 3, v10")
        A("v_add_u32 v10, v10, v8")
        A("buffer_store_dwordx2 %s, v10, s[28:31], 0 offen" % vr(T+16, 2))
        A("v_lshl_add_u32 v10, v9, 3, v8")
        A("v_cmp_eq_u32 vcc, 0, v3")
        A("s_and_saveexec_b64 s[40:41], vcc")
        A("buffer_store_dwordx2 %s, v10, s[28:31], 0 offen offset:1024" % vr(T+18, 2))
        A("s_mov_b64 exec, s[40:41]")
        A("v_mov_b32 v%d, 0" % (T+20))
        A("v_mov_b32 v%d, 0" % (T+21))
        A("v_dot2c_f32_bf16 v%d, v%d, v%d" % (T+20, T+16, T+16))
        A("v_dot2c_f32_bf16 v%d, v%d, v%d" % (T+21, T+18, T+18))
        A("v_dot2c_f32_bf16 v%d, v%d, v%d" % (T+20, T+17, T+17))
        A("v_dot2c_f32_bf16 v%d, v%d, v%d" % (T+21, T+19, T+19))
        A("s_nop 3")
        A("v_cndmask_b32 v%d, 0, v%d, vcc" % (T+21, T+21))
        A("v_add_f32 v%d, v%d, v%d" % (T+20, T+20, T+21))
        reduce4groups(A, T+20, T+22, T+23)
        for ror in (8, 4, 2, 1):
            A("s_nop 1")
            A("v_max_f32_dpp v%d, v%d, v%d row_ror:%d row_mask:0xf bank_mask:0xf" % (T+20, T+20, T+20, ror))
        A("s_lshl_b32 s39, s36, 2")
        A("s_add_u32 s39, s39, s3")
        A("s_lshl_b32 s39, s39, 2")
        A("s_add_u32 s39, s39, 0x%x" % WS_KN)
        A("v_mov_b32 v10, s39")
        A("buffer_store_dword v%d, v10, s[28:31], 0 offen" % (T+20))
        A("s_branch %s" % L_end)
        A.label(Lv)
        A("v_lshrrev_b32 v10, 4, v9")
        A("v_mul_u32_u24 v10, 640, v10")
        A("v_bfe_u32 v11, v9, 2, 1")
        A("v_mul_u32_u24 v11, 320, v11")
        A("v_add3_u32 v10, v10, v11, v8")
        A("v_and_b32 v11, 3, v9")
        A("v_lshl_add_u32 v10, v11, 1, v10")
        A("v_bfe_u32 v11, v9, 3, 1")
        A("v_lshl_add_u32 v10, v11, 3, v10")
        A("v_lshl_add_u32 v10, v3, 6, v10")
        A("v_cvt_pk_bf16_f32 v%d, v%d, v%d" % (T+16, ACCKV, ACCKV+1))
        A("v_cvt_pk_bf16_f32 v%d, v%d, v%d" % (T+17, ACCKV+2, ACCKV+3))
        A("v_cvt_pk_bf16_f32 v%d, v%d, v%d" % (T+18, ACCKV+4, ACCKV+5))
        A("v_cvt_pk_bf16_f32 v%d, v%d, v%d" % (T+19, ACCKV+6, ACCKV+7))
        A("buffer_store_short v%d, v10, s[28:31], 0 offen offset:1280" % (T+16))
        A("buffer_store_short_d16_hi v%d, v10, s[28:31], 0 offen offset:1296" % (T+16))
        A("buffer_store_short v%d, v10, s[28:31], 0 offen offset:1312" % (T+17))
        A("buffer_store_short_d16_hi v%d, v10, s[28:31], 0 offen offset:1328" % (T+17))
        A("v_cmp_eq_u32 vcc, 0, v3")
        A("s_and_saveexec_b64 s[40:41], vcc")
        A("buffer_store_short v%d, v10, s[28:31], 0 offen offset:1536" % (T+18))
        A("buffer_store_short_d16_hi v%d, v10, s[28:31], 0 offen offset:1552" % (T+18))
        A("buffer_store_short v%d, v10, s[28:31], 0 offen offset:1568" % (T+19))
        A("buffer_store_short_d16_hi v%d, v10, s[28:31], 0 offen offset:1584" % (T+19))
        A("s_mov_b64 exec, s[40:41]")
        A("s_branch %s" % L_end)
        A.label(Lz)
        A("s_cmp_lg_u32 s37, 2")
        A("s_cbranch_scc1 %s" % L_end)
        A("s_lshl_b32 s39, s36, 10")
        A("s_add_u32 s39, s39, 0x%x" % WS_ST)
        A("v_lshlrev_b32 v10, 4, v1")
        A("v_add_u32 v10, s39, v10")
        for r in range(4):
            A("v_mov_b32 v%d, 0" % (T+16+r))
        A("buffer_store_dwordx4 %s, v10, s[28:31], 0 offen" % vr(T+16, 4))
    else:
        for i in range(4):
            A("v_mov_b32 v%d, 0" % (ST+i))
        A("v_add_u32 v7, 0x%x, v11" % WS_H)
        for j in range(5):
            a = ACC+4*j
            A("v_cvt_pk_bf16_f32 v%d, v%d, v%d" % (T, a, a+1))
            A("v_cvt_pk_bf16_f32 v%d, v%d, v%d" % (T+1, a+2, a+3))
            for h in range(2):
                A("v_lshlrev_b32 v%d, 16, v%d" % (T+2+2*h, T+h))
                A("v_and_b32 v%d, 0xffff0000, v%d" % (T+3+2*h, T+h))
                A("v_lshlrev_b32 v%d, 16, v%d" % (T+6+2*h, XR+2*j+h))
                A("v_and_b32 v%d, 0xffff0000, v%d" % (T+7+2*h, XR+2*j+h))
            for r in range(4):
                A("v_add_f32 v%d, v%d, v%d" % (T+2+r, T+2+r, T+6+r))
            A("v_cvt_pk_bf16_f32 v%d, v%d, v%d" % (T+10, T+2, T+3))
            A("v_cvt_pk_bf16_f32 v%d, v%d, v%d" % (T+11, T+4, T+5))
            A("buffer_store_dwordx2 %s, v7, s[28:31], 0 offen offset:%d" % (vr(T+10, 2), 32*j))
            for h in range(2):
                A("v_dot2c_f32_bf16 v%d, v%d, v%d" % (ST, T+10+h, ONES))
                A("v_dot2c_f32_bf16 v%d, v%d, v%d" % (ST+1, T+10+h, T+10+h))
                A("v_dot2c_f32_bf16 v%d, v%d, v%d" % (ST+2, T+10+h, WR+2*j+h))
            A("s_nop 1")
        A("s_nop 3")
        reduce4groups(A, ST, T, T+1)
        reduce4groups(A, ST+1, T, T+1)
        reduce4groups(A, ST+2, T, T+1)
        A("v_cmp_eq_u32 vcc, 1, v3")
        A("s_nop 1")
        A("v_cndmask_b32 v%d, v%d, v%d, vcc" % (ST, ST, ST+1))
        A("v_cmp_eq_u32 vcc, 2, v3")
        A("s_nop 1")
        A("v_cndmask_b32 v%d, v%d, v%d, vcc" % (ST, ST, ST+2))
        A("v_cmp_eq_u32 vcc, 3, v3")
        A("s_nop 1")
        A("v_cndmask_b32 v%d, v%d, v%d, vcc" % (ST, ST, ST+3))
        A("v_lshlrev_b32 v8, 4, v6")
        A("v_lshl_add_u32 v8, v3, 2, v8")
        A("v_add_u32 v8, 0x%x, v8" % WS_ST)
        A("buffer_atomic_add_f32 v%d, v8, s[28:31], 0 offen" % ST)
    A.label(L_end)
    A("s_endpgm")
    return kernel_header(name) + A.text() + kernel_desc(name, 256, 48)
```

```python
from common import *
LOG2E = math.log2(math.e)

def bf16r(A, d, s):
    A("v_cvt_pk_bf16_f32 v%d, v%d, v%d" % (d, s, s))
    A("v_lshlrev_b32 v%d, 16, v%d" % (d, d))

def ln_params(A, s0, s1, mb, rinv, t):
    A("v_mul_f32 v%d, 0x%x, v%d" % (mb, f32bits(1.0/640), s0))
    A("v_mul_f32 v%d, 0x%x, v%d" % (t, f32bits(1.0/640), s1))
    A("v_fma_f32 v%d, -v%d, v%d, v%d" % (t, mb, mb, t))
    A("v_max_f32 v%d, 0, v%d" % (t, t))
    bf16r(A, mb, mb)
    bf16r(A, t, t)
    A("v_add_f32 v%d, 0x%x, v%d" % (t, f32bits(1e-5), t))
    bf16r(A, t, t)
    A("v_sqrt_f32 v%d, v%d" % (t, t))
    A("s_nop 0")
    bf16r(A, t, t)
    A("v_rcp_f32 v%d, v%d" % (rinv, t))
    A("s_nop 0")

def wave_sum(A, v, t0, t1):
    for ror in (8, 4, 2, 1):
        A("s_nop 1")
        A("v_add_f32_dpp v%d, v%d, v%d row_ror:%d row_mask:0xf bank_mask:0xf" % (t0, v, v, ror))
        A("v_mov_b32 v%d, v%d" % (v, t0))
    for sw in ("v_permlane16_swap_b32", "v_permlane32_swap_b32"):
        A("v_mov_b32 v%d, v%d" % (t0, v))
        A("v_mov_b32 v%d, v%d" % (t1, v))
        A("s_nop 1")
        A("%s v%d, v%d" % (sw, t0, t1))
        A("s_nop 1")
        A("v_add_f32 v%d, v%d, v%d" % (v, t0, t1))

def argmax_merge(A, val, idx, pv, pi):
    A("v_cmp_gt_f32 vcc, v%d, v%d" % (pv, val))
    A("v_cmp_eq_f32 s[40:41], v%d, v%d" % (pv, val))
    A("v_cmp_lt_u32 s[42:43], v%d, v%d" % (pi, idx))
    A("s_nop 3")
    A("s_and_b64 s[40:41], s[40:41], s[42:43]")
    A("s_or_b64 vcc, vcc, s[40:41]")
    A("v_cndmask_b32 v%d, v%d, v%d, vcc" % (val, val, pv))
    A("v_cndmask_b32 v%d, v%d, v%d, vcc" % (idx, idx, pi))

def reduce8_lanebits45(A, a):
    A("s_nop 1")
    for i in range(4):
        A("v_permlane32_swap_b32 v%d, v%d" % (a+i, a+4+i))
    A("s_nop 1")
    for i in range(4):
        A("v_add_f32 v%d, v%d, v%d" % (a+i, a+i, a+4+i))
    A("s_nop 1")
    for i in range(2):
        A("v_permlane16_swap_b32 v%d, v%d" % (a+i, a+2+i))
    A("s_nop 1")
    for i in range(2):
        A("v_add_f32 v%d, v%d, v%d" % (a+i, a+i, a+2+i))

def unpack8(A, d, s):
    for q in range(4):
        A("v_lshlrev_b32 v%d, 16, v%d" % (d+2*q, s+q))
        A("v_and_b32 v%d, 0xffff0000, v%d" % (d+2*q+1, s+q))

def gen_k4(name):
    A = Asm()
    L_end = name + "_end"
    HC = 16
    RS = 28
    STt = 32
    WM = 64
    WRv = 84
    T = 96
    A("s_cmp_ge_u32 s2, 256")
    A("s_cbranch_scc1 %s" % L_end)
    A("s_load_dwordx2 s[4:5], s[0:1], %d" % KA_WS)
    A("s_load_dwordx2 s[6:7], s[0:1], %d" % KA_OUT)
    A("s_load_dwordx2 s[24:25], s[0:1], %d" % KA_WR)
    A("s_load_dwordx2 s[26:27], s[0:1], %d" % KA_WG)
    A("s_load_dwordx2 s[28:29], s[0:1], %d" % KA_WU)
    A("v_and_b32 v1, 63, v0")
    A("v_lshrrev_b32 v2, 6, v0")
    A("s_nop 0")
    A("v_readfirstlane_b32 s3, v2")
    A("s_waitcnt lgkmcnt(0)")
    srd(A, 8, 4, WS_END)
    srd(A, 12, 6, ACT_BYTES)
    srd(A, 16, 24, D*2)
    A("s_cmp_ge_u32 s2, 108")
    A("s_cselect_b32 s20, s28, s26")
    A("s_cselect_b32 s21, s29, s27")
    A("s_cselect_b32 s30, 108, 0")
    A("s_cselect_b32 s31, 4, 0")
    A("s_and_b32 s21, s21, 0xffff")
    A("s_mov_b32 s22, %d" % (D*F*2))
    A("s_mov_b32 s23, 0x00020000")
    A("s_sub_u32 s30, s2, s30")
    A("s_lshr_b32 s32, s30, 2")
    A("s_and_b32 s33, s30, 3")
    A("v_lshlrev_b32 v3, 7, v0")
    A("v_add_u32 v3, 0x%x, v3" % WS_ST)
    for i in range(8):
        A("buffer_load_dwordx4 %s, v3, s[8:11], 0 offen offset:%d" % (vr(STt+4*i, 4), 16*i))
    A("v_mul_u32_u24 v3, 20, v1")
    A("buffer_load_dwordx4 %s, v3, s[16:19], 0 offen" % vr(WRv, 4))
    A("buffer_load_dword v%d, v3, s[16:19], 0 offen offset:16" % (WRv+4))
    A("v_lshrrev_b32 v4, 5, v0")
    A("s_lshl_b32 s34, s2, 3")
    A("v_add_u32 v4, s34, v4")
    A("v_and_b32 v5, 31, v0")
    A("v_mul_u32_u24 v6, 1280, v4")
    A("v_lshl_add_u32 v6, v5, 4, v6")
    A("v_add_u32 v7, 0x%x, v6" % WS_H)
    for i in range(3):
        A("buffer_load_dwordx4 %s, v7, s[8:11], 0 offen offset:%d" % (vr(HC+4*i, 4), 512*i))
    A("v_lshlrev_b32 v7, 4, v4")
    A("v_add_u32 v7, 0x%x, v7" % WS_ST)
    A("buffer_load_dwordx4 %s, v7, s[8:11], 0 offen" % vr(RS, 4))
    A("v_lshrrev_b32 v8, 3, v0")
    A("v_and_b32 v9, 7, v0")
    A("s_mul_i32 s35, s33, 160")
    A("v_add_u32 v8, s35, v8")
    A("v_mul_u32_u24 v10, 3456, v8")
    A("v_lshl_add_u32 v10, v9, 4, v10")
    A("s_lshl_b32 s35, s32, 7")
    A("v_add_u32 v10, s35, v10")
    for i in range(5):
        A("s_mov_b32 s35, %d" % (i*32*3456))
        A("buffer_load_dwordx4 %s, v10, s[20:23], s35 offen" % vr(WM+4*i, 4))
    A("v_mov_b32 v11, 0")
    A("v_mov_b32 v12, 0x3f803f80")
    A("s_waitcnt vmcnt(9)")
    for i in range(5):
        A("v_dot2c_f32_bf16 v11, v%d, v12" % (WRv+i))
    A("s_nop 3")
    wave_sum(A, 11, T, T+1)
    for i in range(8):
        s0 = STt+4*i
        ln_params(A, s0, s0+1, T, T+1, T+2)
        A("v_fma_f32 v%d, -v%d, v11, v%d" % (T+2, T, s0+2))
        A("v_mul_f32 v%d, v%d, v%d" % (T+2, T+2, T+1))
        if i == 0:
            A("v_mov_b32 v13, v%d" % (T+2))
            A("v_lshlrev_b32 v14, 3, v0")
        else:
            A("v_cmp_gt_f32 vcc, v%d, v13" % (T+2))
            A("v_lshl_add_u32 v%d, v0, 3, %d" % (T+3, i))
            A("s_nop 0")
            A("v_cndmask_b32 v13, v13, v%d, vcc" % (T+2))
            A("v_cndmask_b32 v14, v14, v%d, vcc" % (T+3))
    for ror in (8, 4, 2, 1):
        A("s_nop 1")
        A("v_mov_b32_dpp v%d, v13 row_ror:%d row_mask:0xf bank_mask:0xf" % (T, ror))
        A("v_mov_b32_dpp v%d, v14 row_ror:%d row_mask:0xf bank_mask:0xf" % (T+1, ror))
        argmax_merge(A, 13, 14, T, T+1)
    for sw in ("v_permlane16_swap_b32", "v_permlane32_swap_b32"):
        A("v_mov_b32 v%d, v13" % T)
        A("v_mov_b32 v%d, v13" % (T+1))
        A("v_mov_b32 v%d, v14" % (T+2))
        A("v_mov_b32 v%d, v14" % (T+3))
        A("s_nop 1")
        A("%s v%d, v%d" % (sw, T, T+1))
        A("%s v%d, v%d" % (sw, T+2, T+3))
        A("s_nop 1")
        A("v_mov_b32 v13, v%d" % T)
        A("v_mov_b32 v14, v%d" % (T+2))
        argmax_merge(A, 13, 14, T+1, T+3)
    A("s_lshl_b32 s35, s3, 3")
    A("v_mov_b32 v%d, s35" % T)
    A("v_mov_b32 v15, v14")
    A("v_mov_b32 v14, v13")
    A("ds_write_b64 v%d, v[14:15]" % T)
    A("s_waitcnt lgkmcnt(0)")
    A("s_barrier")
    A("v_mov_b32 v%d, 0" % T)
    A("ds_read_b128 %s, v%d" % (vr(T+4, 4), T))
    A("ds_read_b128 %s, v%d offset:16" % (vr(T+8, 4), T))
    A("s_waitcnt lgkmcnt(0)")
    A("v_mov_b32 v13, v%d" % (T+4))
    A("v_mov_b32 v14, v%d" % (T+5))
    for w in range(1, 4):
        argmax_merge(A, 13, 14, T+4+2*w, T+5+2*w)
    A("s_nop 0")
    A("v_readfirstlane_b32 s36, v14")
    A("s_mul_i32 s35, s36, 1280")
    A("s_add_u32 s35, s35, 0x%x" % WS_H)
    A("v_lshlrev_b32 v%d, 1, v8" % T)
    A("v_add_u32 v%d, s35, v%d" % (T, T))
    for i in range(5):
        A("buffer_load_ushort v%d, v%d, s[8:11], 0 offen offset:%d" % (T+4+i, T, 64*i))
    A("s_lshl_b32 s35, s36, 4")
    A("s_add_u32 s35, s35, 0x%x" % WS_ST)
    A("v_mov_b32 v%d, s35" % (T+1))
    A("buffer_load_dwordx4 %s, v%d, s[8:11], 0 offen" % (vr(T+12, 4), T+1))
    Ln0 = A.newlabel(name+"_n0")
    A("s_cmp_lg_u32 s2, 0")
    A("s_cbranch_scc1 %s" % Ln0)
    A("v_mov_b32 v%d, 0x%x" % (T+2, WS_SEL))
    A("v_mov_b32 v15, v13")
    A("buffer_store_dwordx2 v[14:15], v%d, s[8:11], 0 offen" % (T+2))
    A.label(Ln0)
    U = 112
    A("s_waitcnt vmcnt(11)")
    ln_params(A, RS, RS+1, U, U+1, U+2)
    for i in range(3):
        hc = HC+4*i
        unpack8(A, U+4, hc)
        for e in range(8):
            A("v_sub_f32 v%d, v%d, v%d" % (U+12+e, U+4+e, U))
        for q in range(4):
            A("v_cvt_pk_bf16_f32 v%d, v%d, v%d" % (U+20+q, U+12+2*q, U+13+2*q))
        unpack8(A, U+12, U+20)
        for e in range(8):
            A("v_mul_f32 v%d, v%d, v%d" % (U+12+e, U+1, U+12+e))
        for q in range(4):
            A("v_cvt_pk_bf16_f32 v%d, v%d, v%d" % (U+20+q, U+12+2*q, U+13+2*q))
        unpack8(A, U+12, U+20)
        for e in range(8):
            A("v_add_f32 v%d, v%d, v%d" % (U+12+e, U+4+e, U+12+e))
        for q in range(4):
            A("v_cvt_pk_bf16_f32 v%d, v%d, v%d" % (U+24+4*i+q, U+12+2*q, U+13+2*q))
        if i < 2:
            A("buffer_store_dwordx4 %s, v6, s[12:15], 0 offen offset:%d" % (vr(U+24+4*i, 4), 512*i))
        else:
            A("v_cmp_gt_u32 vcc, 16, v5")
            A("s_and_saveexec_b64 s[40:41], vcc")
            A("buffer_store_dwordx4 %s, v6, s[12:15], 0 offen offset:%d" % (vr(U+24+4*i, 4), 512*i))
            A("s_mov_b64 exec, s[40:41]")
    A("s_cmp_ge_u32 s2, 216")
    A("s_cbranch_scc1 %s" % L_end)
    A("s_waitcnt vmcnt(0)")
    ln_params(A, T+12, T+13, U, U+1, U+2)
    AC = U+4
    for e in range(8):
        A("v_mov_b32 v%d, 0" % (AC+e))
    for i in range(5):
        x = T+4+i
        A("v_lshlrev_b32 v%d, 16, v%d" % (x, x))
        A("v_sub_f32 v%d, v%d, v%d" % (x, x, U))
        bf16r(A, x, x)
        A("v_mul_f32 v%d, v%d, v%d" % (x, U+1, x))
        bf16r(A, x, x)
        unpack8(A, U+12, WM+4*i)
        for e in range(8):
            A("v_fmac_f32 v%d, v%d, v%d" % (AC+e, x, U+12+e))
    reduce8_lanebits45(A, AC)
    for i in range(2):
        A("s_nop 1")
        A("v_add_f32_dpp v%d, v%d, v%d row_ror:8 row_mask:0xf bank_mask:0xf" % (U+12+i, AC+i, AC+i))
    A("v_lshrrev_b32 v%d, 4, v1" % T)
    A("v_lshlrev_b32 v%d, 3, v%d" % (T, T))
    A("v_lshl_add_u32 v%d, v9, 5, v%d" % (T, T))
    A("s_lshl_b32 s35, s3, 8")
    A("v_add_u32 v%d, s35, v%d" % (T, T))
    A("ds_write_b64 v%d, %s offset:64" % (T, vr(U+12, 2)))
    A("s_waitcnt lgkmcnt(0)")
    A("s_barrier")
    A("s_cmp_lg_u32 s3, 0")
    A("s_cbranch_scc1 %s" % L_end)
    A("v_lshlrev_b32 v%d, 2, v1" % T)
    for w in range(4):
        A("ds_read_b32 v%d, v%d offset:%d" % (T+4+w, T, 64+256*w))
    A("s_waitcnt lgkmcnt(0)")
    A("v_add_f32 v%d, v%d, v%d" % (T+4, T+4, T+5))
    A("v_add_f32 v%d, v%d, v%d" % (T+6, T+6, T+7))
    A("v_add_f32 v%d, v%d, v%d" % (T+4, T+4, T+6))
    A("s_lshl_b32 s35, s32, 11")
    A("s_add_u32 s37, s31, s33")
    A("s_lshl_b32 s37, s37, 2")
    A("s_add_u32 s35, s35, s37")
    A("s_add_u32 s35, s35, 0x%x" % WS_GU)
    A("v_lshlrev_b32 v%d, 5, v1" % T)
    A("v_add_u32 v%d, s35, v%d" % (T, T))
    A("buffer_store_dword v%d, v%d, s[8:11], 0 offen" % (T+4, T))
    A.label(L_end)
    A("s_endpgm")
    return kernel_header(name) + A.text() + kernel_desc(name, 160, 48)

def gen_k5(name):
    A = Asm()
    L_end = name + "_end"
    WDv = 16
    GU = 44
    AC = 100
    T = 108
    A("s_cmp_ge_u32 s2, 80")
    A("s_cbranch_scc1 %s" % L_end)
    A("s_load_dwordx2 s[4:5], s[0:1], %d" % KA_WS)
    A("s_load_dwordx2 s[6:7], s[0:1], %d" % KA_OUT)
    A("s_load_dwordx2 s[24:25], s[0:1], %d" % KA_WD)
    A("v_and_b32 v1, 63, v0")
    A("v_lshrrev_b32 v2, 6, v0")
    A("s_nop 0")
    A("v_readfirstlane_b32 s3, v2")
    A("s_waitcnt lgkmcnt(0)")
    srd(A, 8, 4, WS_END)
    srd(A, 12, 6, ACT_BYTES)
    srd(A, 16, 24, F*D*2)
    A("v_mov_b32 v3, 0x%x" % WS_SEL)
    A("buffer_load_dwordx2 v[4:5], v3, s[8:11], 0 offen")
    A("v_lshlrev_b32 v3, 5, v0")
    A("v_add_u32 v3, 0x%x, v3" % WS_GU)
    for i in range(7):
        A("s_mov_b32 s35, %d" % (i*256*32))
        A("buffer_load_dwordx4 %s, v3, s[8:11], s35 offen" % vr(GU+8*i, 4))
        A("buffer_load_dwordx4 %s, v3, s[8:11], s35 offen offset:16" % vr(GU+8*i+4, 4))
    A("v_mul_u32_u24 v3, 1280, v0")
    A("s_lshl_b32 s34, s2, 4")
    A("v_add_u32 v3, s34, v3")
    for i in range(7):
        A("s_mov_b32 s35, %d" % (i*256*1280))
        A("buffer_load_dwordx4 %s, v3, s[16:19], s35 offen" % vr(WDv+4*i, 4))
    A("s_waitcnt vmcnt(21)")
    A("v_readfirstlane_b32 s36, v4")
    A("s_nop 3")
    A("s_min_u32 s36, s36, 2047")
    A("s_mul_i32 s35, s36, 1280")
    A("s_add_u32 s37, s35, s34")
    A("v_lshrrev_b32 v6, 4, v1")
    A("v_lshlrev_b32 v6, 2, v6")
    A("v_add_u32 v6, s37, v6")
    A("v_add_u32 v7, 0x%x, v6" % WS_H)
    A("buffer_load_dword v8, v7, s[8:11], 0 offen")
    A("s_lshl_b32 s35, s36, 4")
    A("s_add_u32 s35, s35, 0x%x" % WS_ST)
    A("v_mov_b32 v7, s35")
    A("buffer_load_dwordx4 v[12:15], v7, s[8:11], 0 offen")
    for e in range(8):
        A("v_mov_b32 v%d, 0" % (AC+e))
    A("s_movk_i32 s35, 192")
    A("v_cmp_gt_u32 s[38:39], s35, v0")
    A("s_waitcnt vmcnt(9)")
    for i in range(7):
        g = GU+8*i
        A("v_add_f32 v%d, v%d, v%d" % (g, g, g+1))
        A("v_add_f32 v%d, v%d, v%d" % (g+2, g+2, g+3))
        A("v_add_f32 v%d, v%d, v%d" % (g+4, g+4, g+5))
        A("v_add_f32 v%d, v%d, v%d" % (g+6, g+6, g+7))
        A("v_add_f32 v%d, v%d, v%d" % (g, g, g+2))
        A("v_add_f32 v%d, v%d, v%d" % (g+4, g+4, g+6))
        bf16r(A, g, g)
        bf16r(A, g+4, g+4)
        A("v_mul_f32 v%d, 0x%x, v%d" % (g+1, f32bits(-LOG2E), g))
        A("v_exp_f32 v%d, v%d" % (g+1, g+1))
        A("s_nop 0")
        A("v_add_f32 v%d, 1.0, v%d" % (g+1, g+1))
        A("v_rcp_f32 v%d, v%d" % (g+1, g+1))
        A("s_nop 0")
        A("v_mul_f32 v%d, v%d, v%d" % (g, g, g+1))
        bf16r(A, g, g)
        A("v_mul_f32 v%d, v%d, v%d" % (g, g, g+4))
        bf16r(A, g, g)
        if i == 6:
            A("v_cndmask_b32 v%d, 0, v%d, s[38:39]" % (g, g))
    A("s_waitcnt vmcnt(0)")
    for i in range(7):
        unpack8(A, T, WDv+4*i)
        for e in range(8):
            A("v_fmac_f32 v%d, v%d, v%d" % (AC+e, GU+8*i, T+e))
    reduce8_lanebits45(A, AC)
    for ror in (8, 4, 2, 1):
        for i in range(2):
            A("s_nop 1")
            A("v_add_f32_dpp v%d, v%d, v%d row_ror:%d row_mask:0xf bank_mask:0xf" % (T+i, AC+i, AC+i, ror))
        for i in range(2):
            A("v_mov_b32 v%d, v%d" % (AC+i, T+i))
    A("v_lshrrev_b32 v%d, 4, v1" % T)
    A("v_lshlrev_b32 v%d, 3, v%d" % (T, T))
    A("s_lshl_b32 s35, s3, 5")
    A("v_add_u32 v%d, s35, v%d" % (T+1, T))
    A("ds_write_b64 v%d, %s" % (T+1, vr(AC, 2)))
    A("s_waitcnt lgkmcnt(0)")
    A("s_barrier")
    A("s_cmp_lg_u32 s3, 0")
    A("s_cbranch_scc1 %s" % L_end)
    for w in range(4):
        A("ds_read_b64 %s, v%d offset:%d" % (vr(T+2+2*w, 2), T, 32*w))
    A("s_waitcnt lgkmcnt(0)")
    for i in range(2):
        A("v_add_f32 v%d, v%d, v%d" % (T+2+i, T+2+i, T+4+i))
        A("v_add_f32 v%d, v%d, v%d" % (T+6+i, T+6+i, T+8+i))
        A("v_add_f32 v%d, v%d, v%d" % (T+2+i, T+2+i, T+6+i))
        bf16r(A, T+2+i, T+2+i)
    bf16r(A, 5, 5)
    A("v_mul_f32 v5, 0x%x, v5" % f32bits(-LOG2E))
    A("v_exp_f32 v5, v5")
    A("s_nop 0")
    A("v_add_f32 v5, 1.0, v5")
    A("v_rcp_f32 v5, v5")
    A("s_nop 0")
    bf16r(A, 5, 5)
    ln_params(A, 12, 13, T+10, T+11, T+12)
    A("v_lshlrev_b32 v9, 16, v8")
    A("v_and_b32 v10, 0xffff0000, v8")
    for i in range(2):
        y = T+2+i; h = 9+i; t = T+13
        A("v_mul_f32 v%d, v5, v%d" % (y, y))
        bf16r(A, y, y)
        A("v_sub_f32 v%d, v%d, v%d" % (t, h, T+10))
        bf16r(A, t, t)
        A("v_mul_f32 v%d, v%d, v%d" % (t, T+11, t))
        bf16r(A, t, t)
        A("v_add_f32 v%d, v%d, v%d" % (t, t, y))
        bf16r(A, t, t)
        A("v_add_f32 v%d, v%d, v%d" % (y, h, t))
    A("v_cvt_pk_bf16_f32 v%d, v%d, v%d" % (T+2, T+2, T+3))
    A("buffer_store_dword v%d, v6, s[12:15], 0 offen" % (T+2))
    A.label(L_end)
    A("s_endpgm")
    return kernel_header(name) + A.text() + kernel_desc(name, 128, 48)
```

```python
import sys
from common import *
import k_gemm, k_attn, k_tail
HDR = open("sequential_preLN__grouped_kv_mqa__moe_arch_mod__prompt.s.ref").read().split("; Override launch")[0]
def build(parts, out):
    launches = []; bodies = []
    for p in parts:
        launches.append("; @launch kernel=%s grid=(%d,1,1) block=(%d,1,1) lds=%d" % (p[0], p[1], p[2], p[3]))
        bodies.append(p[4])
    txt = HDR + "\n".join(launches) + "\n" + '.amdgcn_target "amdgcn-amd-amdhsa--gfx950"\n' + "\n".join(bodies)
    open(out, "w").write(txt)
def parts(n, force_slow=False):
    ps = [("k1_kernel", 256, 256, k_gemm.LDS_GEMM, k_gemm.gen_gemm('qkv', "k1_kernel"))]
    if n >= 2: ps.append(("k2_kernel", 256, 512, k_attn.LDS_ATTN, k_attn.gen_attn("k2_kernel", force_slow)))
    if n >= 3: ps.append(("k3_kernel", 256, 256, k_gemm.LDS_GEMM, k_gemm.gen_gemm('oproj', "k3_kernel")))
    if n >= 4: ps.append(("k4_kernel", 256, 256, 2048, k_tail.gen_k4("k4_kernel")))
    if n >= 5: ps.append(("k5_kernel", 80, 256, 1024, k_tail.gen_k5("k5_kernel")))
    return ps
if __name__ == "__main__":
    build(parts(5), "k5.s")
    build(parts(5), "sequential_preLN__grouped_kv_mqa__moe_arch_mod__prompt.s")
```

```python
import math

S, D, H, DH, F = 2048, 640, 32, 20, 1728
KA_X, KA_WQ, KA_WK, KA_WV, KA_WO, KA_BX, KA_WR, KA_WG, KA_WU, KA_WD, KA_OUT, KA_DBG, KA_WS = [8*i for i in range(13)]
WS_Q   = 0x000000
WS_KV  = 0x280000
WS_KN  = 0x2A8000
WS_ST  = 0x2A9000
WS_O   = 0x300000
WS_H   = 0x580000
WS_GU  = 0x800000
WS_SEL = 0x810000
WS_DBG = 0x900000
WS_END = 0x1400000
ACT_BYTES = S*D*2

def f32bits(x):
    import struct
    return struct.unpack("<I", struct.pack("<f", x))[0]

class Asm:
    def __init__(self):
        self.lines = []
        self.nlabel = 0
    def __call__(self, s):
        for l in s.strip("\n").split("\n"):
            self.lines.append("    " + l.strip())
    def label(self, name):
        self.lines.append(name + ":")
    def newlabel(self, p="L"):
        self.nlabel += 1
        return "%s_%d" % (p, self.nlabel)
    def comment(self, s):
        self.lines.append("    ; " + s)
    def stamp(self, i):
        if getattr(self, "stamps", False):
            self("s_memtime s[%d:%d]" % (64+2*i, 65+2*i))
            self("s_waitcnt lgkmcnt(0)")
            self.nstamp = max(getattr(self, "nstamp", 0), i+1)
    def dump_stamps(self, srdws, region):
        if not getattr(self, "stamps", False): return
        self("s_lshl_b32 s62, s2, 4")
        self("s_add_u32 s62, s62, s3")
        self("s_lshl_b32 s62, s62, 6")
        self("s_add_u32 s62, s62, 0x%x" % region)
        self("v_mov_b32 v250, s62")
        for i in range(self.nstamp):
            self("v_mov_b32 v251, s%d" % (64+2*i))
            self("buffer_store_dword v251, v250, s[%d:%d], 0 offen offset:%d" % (srdws, srdws+3, 4*i))
    def text(self):
        return "\n".join(self.lines) + "\n"

def vr(a, n=1):
    return "v%d" % a if n == 1 else "v[%d:%d]" % (a, a+n-1)
def sr(a, n=1):
    return "s%d" % a if n == 1 else "s[%d:%d]" % (a, a+n-1)

def srd(A, d, base, nbytes):
    A("s_mov_b32 s%d, s%d" % (d, base))
    A("s_and_b32 s%d, s%d, 0xffff" % (d+1, base+1))
    A("s_mov_b32 s%d, 0x%x" % (d+2, nbytes))
    A("s_mov_b32 s%d, 0x00020000" % (d+3))

def kernel_header(name):
    return """.text
.globl %s
.p2align 8
.type %s,@function
%s:
""" % (name, name, name)

def kernel_desc(name, vgpr, sgpr):
    acc = ((vgpr + 3)//4)*4
    return """.section .rodata,"a"
.p2align 6
.amdhsa_kernel %s
  .amdhsa_next_free_vgpr %d
  .amdhsa_next_free_sgpr %d
  .amdhsa_accum_offset %d
  .amdhsa_group_segment_fixed_size 0
  .amdhsa_kernarg_size 104
  .amdhsa_user_sgpr_count 2
  .amdhsa_user_sgpr_kernarg_segment_ptr 1
  .amdhsa_system_sgpr_workgroup_id_x 1
.end_amdhsa_kernel
""" % (name, vgpr, sgpr, acc)

def reduce4groups(A, v, t0, t1):
    A("v_mov_b32 v%d, v%d" % (t0, v))
    A("v_mov_b32 v%d, v%d" % (t1, v))
    A("s_nop 1")
    A("v_permlane32_swap_b32 v%d, v%d" % (t0, t1))
    A("s_nop 1")
    A("v_add_f32 v%d, v%d, v%d" % (v, t0, t1))
    A("v_mov_b32 v%d, v%d" % (t0, v))
    A("v_mov_b32 v%d, v%d" % (t1, v))
    A("s_nop 1")
    A("v_permlane16_swap_b32 v%d, v%d" % (t0, t1))
    A("s_nop 1")
    A("v_add_f32 v%d, v%d, v%d" % (v, t0, t1))
```

```python
from common import *

LDS_ATTN = 163840
THR2 = 2200.0

def wave_max(A, v, t0, t1):
    for ror in (8, 4, 2, 1):
        A("s_nop 1")
        A("v_max_f32_dpp v%d, v%d, v%d row_ror:%d row_mask:0xf bank_mask:0xf" % (v, v, v, ror))
    for sw in ("v_permlane16_swap_b32", "v_permlane32_swap_b32"):
        A("v_mov_b32 v%d, v%d" % (t0, v))
        A("v_mov_b32 v%d, v%d" % (t1, v))
        A("s_nop 1")
        A("%s v%d, v%d" % (sw, t0, t1))
        A("s_nop 1")
        A("v_max_f32 v%d, v%d, v%d" % (v, t0, t1))

def gen_attn(name, force_slow=False, stamps=False, dbgoff=0):
    A = Asm()
    A.stamps = stamps
    L_end = name + "_end"
    Q1 = [16, 24]; Q2 = [20, 28]
    KL = [32, 40]; KH = [36, 44]; VF = [48, 56]
    SS = [[64, 80], [96, 112]]
    P = [128, 136]; O = [144, 160]; M = [176, 177]; T = 178
    A("s_cmp_ge_u32 s2, 256")
    A("s_cbranch_scc1 %s_exit" % name)
    A("s_load_dwordx2 s[4:5], s[0:1], %d" % KA_WS)
    A("s_load_dwordx2 s[24:25], s[0:1], %d" % KA_WO)
    A("s_load_dwordx4 s[28:31], s[0:1], %d" % KA_WG)
    A("s_load_dwordx2 s[26:27], s[0:1], %d" % KA_WD)
    A("v_and_b32 v1, 63, v0")
    A("v_and_b32 v2, 31, v0")
    A("v_lshrrev_b32 v3, 5, v1")
    A("v_lshrrev_b32 v7, 6, v0")
    A("s_nop 0")
    A("v_readfirstlane_b32 s3, v7")
    A("s_mov_b32 s14, 0x000fffff")
    A("s_mov_b32 s15, 0x000fffff")
    A("s_mov_b32 s18, 0x07060302")
    A("s_waitcnt lgkmcnt(0)")
    A.stamp(0)
    A.rstamp(6)
    srd(A, 8, 4, WS_END)
    A("s_and_b32 s12, s3, 3")
    A("s_lshr_b32 s13, s3, 2")
    A("s_lshl_b32 s19, s2, 3")
    A("s_lshl_b32 s17, s12, 1")
    A("s_add_u32 s19, s19, s17")
    A("s_mul_i32 s19, s19, 1280")
    A("v_mul_u32_u24 v8, 40, v2")
    A("v_lshl_add_u32 v8, v3, 4, v8")
    A("v_add_u32 v8, s19, v8")
    for X in range(2):
        for r in range(4):
            A("v_mov_b32 v%d, 0" % (Q2[X]+r))
    for X in range(2):
        A("buffer_load_dwordx4 %s, v8, s[8:11], 0 offen offset:%d" % (vr(Q1[X], 4), 1280*X))
    A("s_mov_b32 s20, -1")
    A("s_mov_b32 s21, 0")
    A("s_mov_b64 exec, s[20:21]")
    for X in range(2):
        A("buffer_load_dwordx2 %s, v8, s[8:11], 0 offen offset:%d" % (vr(Q2[X], 2), 1280*X+32))
    A("s_mov_b64 exec, -1")
    A("v_lshlrev_b32 v9, 3, v1")
    A("v_add_u32 v9, 0x%x, v9" % WS_KN)
    A("buffer_load_dwordx2 v[10:11], v9, s[8:11], 0 offen")
    A("v_lshlrev_b32 v7, 4, v1")
    A("v_add_u32 v7, 0x%x, v7" % WS_KV)
    A("s_lshl_b32 s22, s3, 10")
    def dma_pair():
        A("s_mov_b32 m0, s22")
        A("s_add_u32 s23, s22, 81920")
        A("buffer_load_dwordx4 v7, s[8:11], s22 offen lds")
        A("s_mov_b32 m0, s23")
        A("s_add_u32 s22, s22, 8192")
        A("buffer_load_dwordx4 v7, s[8:11], s23 offen lds")
    for i in range(4):
        dma_pair()
    srd(A, 32, 24, D*D*2); srd(A, 36, 28, D*F*2); srd(A, 40, 30, D*F*2); srd(A, 44, 26, D*F*2)
    for X in range(2):
        for r in range(16):
            A("v_mov_b32 v%d, 0" % (O[X]+r))
        A("v_mov_b32 v%d, 0" % M[X])
    for b in range(2):
        A("v_mov_b32 v%d, 0" % (KH[b]+2))
        A("v_mov_b32 v%d, 0" % (KH[b]+3))
    A("v_cmp_eq_u32 vcc, 20, v2")
    A("v_mov_b32 v12, 0x3f803f80")
    A("s_nop 1")
    A("v_cndmask_b32 v12, 0, v12, vcc")
    for b in range(2):
        for r in range(8):
            A("v_mov_b32 v%d, v12" % (VF[b]+r))
    A("s_mul_i32 s17, s13, 81920")
    A("v_lshlrev_b32 v4, 4, v1")
    A("v_add_u32 v4, s17, v4")
    A("v_lshlrev_b32 v5, 3, v2")
    A("v_add_u32 v5, s17, v5")
    A("v_min_u32 v6, 19, v2")
    A("v_mul_u32_u24 v12, 20, v3")
    A("v_add_u32 v6, v6, v12")
    A("v_lshlrev_b32 v6, 4, v6")
    A("v_add_u32 v6, s17, v6")
    A.stamp(1)
    A("s_waitcnt vmcnt(8)")
    A("v_max_f32 v10, v10, v11")
    wave_max(A, 10, 12, 13)
    for X in range(2):
        A("v_mov_b32 v%d, 0" % (12+X))
    for X in range(2):
        for r in range(4):
            A("v_dot2c_f32_bf16 v%d, v%d, v%d" % (12+X, Q1[X]+r, Q1[X]+r))
        for r in range(2):
            A("v_dot2c_f32_bf16 v%d, v%d, v%d" % (12+X, Q2[X]+r, Q2[X]+r))
    A("s_nop 3")
    A("v_max_f32 v12, v12, v13")
    A("v_mov_b32 v13, v12")
    A("v_mov_b32 v14, v12")
    A("s_nop 1")
    A("v_permlane32_swap_b32 v13, v14")
    A("s_nop 1")
    A("v_add_f32 v12, v13, v14")
    A("v_mul_f32 v12, v12, v10")
    A("v_mov_b32 v13, 0x%x" % f32bits(THR2))
    A("v_cmp_nle_f32 vcc, v12, v13")
    A.stamp(2)
    A("s_waitcnt vmcnt(0)")
    A("s_barrier")
    L_slow = name + "_slow"; L_merge = name + "_merge"
    if force_slow:
        A("s_branch %s" % L_slow)
    else:
        A("s_cmp_lg_u64 vcc, 0")
        A("s_cbranch_scc1 %s" % L_slow)

    def rdK(b, off):
        A("ds_read_b128 %s, v4 offset:%d" % (vr(KL[b], 4), off))
        A("ds_read_b64 %s, v5 offset:%d" % (vr(KH[b], 2), off+1024))
    def rdV(b, off):
        A("s_mov_b64 exec, s[14:15]")
        A("ds_read_b128 %s, v6 offset:%d" % (vr(VF[b], 4), off+1280))
        A("ds_read_b128 %s, v6 offset:%d" % (vr(VF[b]+4, 4), off+1920))
        A("s_mov_b64 exec, -1")
    def qk(dst, kb, X, part):
        if part == 0:
            A("v_mfma_f32_32x32x16_bf16 %s, %s, %s, 0" % (vr(dst, 16), vr(KL[kb], 4), vr(Q1[X], 4)))
        else:
            A("v_mfma_f32_32x32x16_bf16 %s, %s, %s, %s" % (vr(dst, 16), vr(KH[kb], 4), vr(Q2[X], 4), vr(dst, 16)))
    def pv(X, vb, m):
        A("v_mfma_f32_32x32x16_bf16 %s, %s, %s, %s" % (vr(O[X], 16), vr(VF[vb]+4*m, 4), vr(P[X]+4*m, 4), vr(O[X], 16)))
    def exps(s, lo, hi):
        for r in range(lo, hi):
            A("v_exp_f32 v%d, v%d" % (s+r, s+r))
    def perm(X, s, i):
        A("v_perm_b32 v%d, v%d, v%d, s18" % (P[X]+i, s+2*i+1, s+2*i))

    A.stamp(3)
    rdK(0, 0)
    A("s_waitcnt lgkmcnt(0)")
    for X in range(2):
        qk(SS[0][X], 0, X, 0); qk(SS[0][X], 0, X, 1)
    rdK(1, 2560)
    rdV(0, 0)
    A("s_mov_b32 s16, 0")
    L_loop = name + "_loop"
    A.label(L_loop)
    Lw = name + "_now"
    A("s_cmp_lg_u32 s16, 2")
    A("s_cbranch_scc1 %s" % Lw)
    A("s_waitcnt vmcnt(0)")
    A("s_barrier")
    A("s_lshl_b32 s17, s2, 3")
    A("s_add_u32 s17, s17, s3")
    A("v_lshlrev_b32 v%d, 11, v1" % T)
    A("v_add_u32 v%d, s17, v%d" % (T, T))
    A("v_lshlrev_b32 v%d, 7, v%d" % (T, T))
    for q in (32, 36, 40, 44):
        A("buffer_load_dword v%d, v%d, s[%d:%d], 0 offen" % (T+1, T, q, q+3))
    A.label(Lw)
    for u in range(4):
        b = u & 1
        sa, sb = SS[b]
        na, nb = SS[1-b]
        A("s_waitcnt lgkmcnt(0)")
        if u < 3:
            Ld = A.newlabel(name + "_nd")
            A("s_cmp_ge_u32 s16, 2")
            A("s_cbranch_scc1 %s" % Ld)
            dma_pair()
            A.label(Ld)
        rdK(b, (u+2)*2560)
        rdV(1-b, (u+1)*2560)
        qk(na, 1-b, 0, 0)
        exps(sa, 0, 4)
        qk(na, 1-b, 0, 1)
        exps(sa, 4, 8); perm(0, sa, 0); perm(0, sa, 1)
        qk(nb, 1-b, 1, 0)
        exps(sa, 8, 12); perm(0, sa, 2); perm(0, sa, 3)
        qk(nb, 1-b, 1, 1)
        exps(sa, 12, 16); perm(0, sa, 4); perm(0, sa, 5)
        exps(sb, 0, 2); perm(0, sa, 6); perm(0, sa, 7)
        pv(0, b, 0)
        exps(sb, 2, 6)
        pv(0, b, 1)
        exps(sb, 6, 10); perm(1, sb, 0); perm(1, sb, 1); perm(1, sb, 2); perm(1, sb, 3)
        exps(sb, 10, 13)
        pv(1, b, 0)
        exps(sb, 13, 16); perm(1, sb, 4); perm(1, sb, 5); perm(1, sb, 6); perm(1, sb, 7)
        if u == 3:
            A("v_add_u32 v4, 10240, v4")
            A("v_add_u32 v5, 10240, v5")
            A("v_add_u32 v6, 10240, v6")
            A("s_add_u32 s16, s16, 1")
            A("s_cmp_lt_u32 s16, 8")
        else:
            A("s_nop 1")
        pv(1, b, 1)
    A("s_cbranch_scc1 %s" % L_loop)
    A("s_branch %s" % L_merge)

    A.label(L_slow)
    for i in range(6):
        dma_pair()
    A("s_waitcnt vmcnt(0)")
    A("s_barrier")
    for X in range(2):
        A("v_mov_b32 v%d, 0x%x" % (M[X], f32bits(-3.0e38)))
    A("s_mov_b32 s16, 0")
    L_sl = name + "_sloop"
    A.label(L_sl)
    rdK(0, 0)
    rdV(0, 0)
    A("s_waitcnt lgkmcnt(0)")
    for X in range(2):
        qk(SS[0][X], 0, X, 0); qk(SS[0][X], 0, X, 1)
    A("s_nop 7"); A("s_nop 7")
    for X in range(2):
        s = SS[0][X]
        A("v_max3_f32 v%d, v%d, v%d, v%d" % (T, s, s+1, s+2))
        for r in range(3, 15, 2):
            A("v_max3_f32 v%d, v%d, v%d, v%d" % (T, T, s+r, s+r+1))
        A("v_max_f32 v%d, v%d, v%d" % (T, T, s+15))
        A("v_mov_b32 v%d, v%d" % (T+1, T))
        A("v_mov_b32 v%d, v%d" % (T+2, T))
        A("s_nop 1")
        A("v_permlane32_swap_b32 v%d, v%d" % (T+1, T+2))
        A("s_nop 1")
        A("v_max3_f32 v%d, v%d, v%d, v%d" % (T, T+1, T+2, M[X]))
        A("v_sub_f32 v%d, v%d, v%d" % (T+1, M[X], T))
        A("v_exp_f32 v%d, v%d" % (T+1, T+1))
        A("v_mov_b32 v%d, v%d" % (M[X], T))
        for r in range(16):
            A("v_mul_f32 v%d, v%d, v%d" % (O[X]+r, T+1, O[X]+r))
        for r in range(16):
            A("v_sub_f32 v%d, v%d, v%d" % (s+r, s+r, T))
        exps(s, 0, 16)
        A("s_nop 0")
        for i in range(8):
            perm(X, s, i)
        A("s_nop 1")
        pv(X, 0, 0); pv(X, 0, 1)
    A("s_nop 7"); A("s_nop 7")
    A("v_add_u32 v4, 2560, v4")
    A("v_add_u32 v5, 2560, v5")
    A("v_add_u32 v6, 2560, v6")
    A("s_add_u32 s16, s16, 1")
    A("s_cmp_lt_u32 s16, 32")
    A("s_cbranch_scc1 %s" % L_sl)

    A.label(L_merge)
    A("s_nop 7"); A("s_nop 7")
    A("s_waitcnt vmcnt(0) lgkmcnt(0)")
    A.stamp(4)
    A("s_barrier")
    A("s_lshl_b32 s17, s3, 12")
    A("v_lshlrev_b32 v4, 4, v1")
    A("v_add_u32 v5, s17, v4")
    A("s_xor_b32 s17, s3, 4")
    A("s_lshl_b32 s17, s17, 12")
    A("v_add_u32 v6, s17, v4")
    A("v_lshlrev_b32 v7, 2, v1")
    A("v_add_u32 v8, s17, v7")
    A("s_lshl_b32 s17, s3, 12")
    A("v_add_u32 v7, s17, v7")
    L_k1 = name + "_mk1"
    A("s_cmp_eq_u32 s13, 1")
    A("s_cbranch_scc1 %s" % L_k1)
    for keep in range(2):
        send = 1-keep
        if keep == 1:
            A.label(L_k1)
        for q in range(3):
            A("ds_write_b128 v5, %s offset:%d" % (vr(O[send]+4*q, 4), 1024*q))
        A("ds_write_b32 v7, v%d offset:3072" % M[send])
        A("s_waitcnt lgkmcnt(0)")
        A("s_barrier")
        for q in range(3):
            A("ds_read_b128 %s, v6 offset:%d" % (vr(O[send]+4*q, 4), 1024*q))
        A("ds_read_b32 v%d, v8 offset:3072" % M[send])
        A("s_waitcnt lgkmcnt(0)")
        A("v_max_f32 v%d, v%d, v%d" % (T, M[keep], M[send]))
        A("v_sub_f32 v%d, v%d, v%d" % (T+1, M[keep], T))
        A("v_sub_f32 v%d, v%d, v%d" % (T+2, M[send], T))
        A("v_exp_f32 v%d, v%d" % (T+1, T+1))
        A("v_exp_f32 v%d, v%d" % (T+2, T+2))
        A("s_nop 0")
        for r in range(12):
            A("v_mul_f32 v%d, v%d, v%d" % (O[keep]+r, T+1, O[keep]+r))
        for r in range(12):
            A("v_fma_f32 v%d, v%d, v%d, v%d" % (O[keep]+r, T+2, O[send]+r, O[keep]+r))
        A("v_mov_b32 v%d, v%d" % (T+1, O[keep]+8))
        A("v_mov_b32 v%d, v%d" % (T+2, O[keep]+8))
        A("s_nop 1")
        A("v_permlane32_swap_b32 v%d, v%d" % (T+1, T+2))
        A("s_nop 1")
        A("v_rcp_f32 v%d, v%d" % (T+2, T+2))
        A("s_nop 0")
        for r in range(12):
            A("v_mul_f32 v%d, v%d, v%d" % (O[keep]+r, T+2, O[keep]+r))
        for i in range(6):
            A("v_cvt_pk_bf16_f32 v%d, v%d, v%d" % (T+4+i, O[keep]+2*i, O[keep]+2*i+1))
        A("v_mul_u32_u24 v9, 40, v2")
        A("v_lshl_add_u32 v9, v3, 3, v9")
        A("v_add_u32 v9, s19, v9")
        A("v_add_u32 v9, 0x%x, v9" % (WS_O + 1280*keep))
        A("buffer_store_dwordx2 %s, v9, s[8:11], 0 offen" % vr(T+4, 2))
        A("buffer_store_dwordx2 %s, v9, s[8:11], 0 offen offset:16" % vr(T+6, 2))
        A("s_mov_b64 exec, s[20:21]")
        A("buffer_store_dwordx2 %s, v9, s[8:11], 0 offen offset:32" % vr(T+8, 2))
        A("s_mov_b64 exec, -1")
        if keep == 0:
            A("s_branch %s" % L_end)
    A.label(L_end)
    A.stamp(5)
    A.rstamp(7)
    A.dump_stamps(8, WS_DBG + dbgoff)
    A.label(name + "_exit")
    A("s_endpgm")
    return kernel_header(name) + A.text() + kernel_desc(name, 256 if stamps else 192, 96 if stamps else 56)
```

```python
from common import *

LDS_W_PITCH = 192
LDS_KVB = 124800
LDS_CSB = 153472
LDS_GEMM = 155264
QSCALE = (20.0 ** -0.5) * math.log2(math.e)

def gen_gemm(mode, name, stamps=False, dbgoff=0):
    A = Asm()
    A.stamps = stamps
    qkv = (mode == 'qkv')
    L_end = name + "_end"
    XF = 16; WST = 96; KVST = 200; ACC = 228; ACCKV = 248
    CS = 96; CSKV = 116; AF = 124; NB = 6; ONES = 156; ST = 160; T = 168
    XR = 200; WR = 210
    A("s_cmp_ge_u32 s2, 256")
    A("s_cbranch_scc1 %s_exit" % name)
    if qkv:
        A("s_load_dwordx2 s[4:5], s[0:1], %d" % KA_X)
        A("s_load_dwordx2 s[6:7], s[0:1], %d" % KA_WQ)
        A("s_load_dwordx2 s[8:9], s[0:1], %d" % KA_WK)
        A("s_load_dwordx2 s[10:11], s[0:1], %d" % KA_WV)
    else:
        A("s_load_dwordx2 s[6:7], s[0:1], %d" % KA_WO)
        A("s_load_dwordx2 s[8:9], s[0:1], %d" % KA_X)
        A("s_load_dwordx2 s[10:11], s[0:1], %d" % KA_WR)
    A("s_load_dwordx2 s[12:13], s[0:1], %d" % KA_WS)
    A("s_and_b32 s36, s2, 7")
    A("s_lshr_b32 s37, s2, 6")
    A("s_lshl_b32 s37, s37, 3")
    A("s_add_u32 s36, s36, s37")
    A("s_lshr_b32 s37, s2, 3")
    A("s_and_b32 s37, s37, 7")
    A("v_and_b32 v1, 63, v0")
    A("v_and_b32 v2, 15, v0")
    A("v_lshrrev_b32 v3, 4, v1")
    A("v_lshrrev_b32 v5, 6, v0")
    A("s_nop 0")
    A("v_readfirstlane_b32 s3, v5")
    A("s_waitcnt lgkmcnt(0)")
    A.stamp(0)
    srd(A, 28, 12, WS_END)
    if qkv:
        srd(A, 16, 4, ACT_BYTES)
    else:
        srd(A, 16, 12, WS_END)
    srd(A, 20, 6, D*D*2)
    if qkv:
        A("s_cmp_eq_u32 s37, 0")
        A("s_cselect_b32 s24, s8, s10")
        A("s_cselect_b32 s25, s9, s11")
        A("s_and_b32 s25, s25, 0xffff")
        A("s_mov_b32 s26, %d" % (D*DH*2))
        A("s_mov_b32 s27, 0x00020000")
    else:
        srd(A, 24, 8, ACT_BYTES)
        srd(A, 32, 10, D*2)
    A("s_lshl_b32 s38, s36, 6")
    A("s_lshl_b32 s39, s3, 4")
    A("s_add_u32 s38, s38, s39")
    A("v_add_u32 v6, s38, v2")
    A("v_mul_u32_u24 v4, 1280, v6")
    A("v_lshl_add_u32 v4, v3, 4, v4")
    if not qkv:
        A("v_add_u32 v4, 0x%x, v4" % WS_O)
    for s in range(20):
        A("buffer_load_dwordx4 %s, v4, s[16:19], 0 offen offset:%d" % (vr(XF+4*s, 4), 64*s))
    A("v_min_u32 v7, 249, v0")
    A("v_mul_u32_u24 v8, 0x199a, v7")
    A("v_lshrrev_b32 v8, 16, v8")
    A("v_mul_u32_u24 v9, 10, v8")
    A("v_sub_u32 v9, v7, v9")
    A("v_lshlrev_b32 v9, 4, v9")
    A("v_mul_u32_u24 v10, 1280, v8")
    A("v_add_u32 v10, v10, v9")
    A("s_mul_i32 s39, s37, 160")
    A("v_add_u32 v10, s39, v10")
    for i in range(26):
        A("s_mov_b32 s40, %d" % (i*25*1280))
        A("buffer_load_dwordx4 %s, v10, s[20:23], s40 offen" % vr(WST+4*i, 4))
    L_nokv = A.newlabel(name+"_nokvld")
    if qkv:
        A("s_cmp_ge_u32 s37, 2")
        A("s_cbranch_scc1 %s" % L_nokv)
        A("v_lshlrev_b32 v11, 4, v0")
        for i in range(7):
            A("s_mov_b32 s40, %d" % (i*4096))
            A("buffer_load_dwordx4 %s, v11, s[24:27], s40 offen" % vr(KVST+4*i, 4))
        A.label(L_nokv)
    else:
        A("v_mul_u32_u24 v11, 1280, v6")
        A("s_mul_i32 s39, s37, 160")
        A("v_lshl_add_u32 v12, v3, 3, s39")
        A("v_add_u32 v11, v11, v12")
        for j in range(5):
            A("buffer_load_dwordx2 %s, v11, s[24:27], 0 offen offset:%d" % (vr(XR+2*j, 2), 32*j))
        for j in range(5):
            A("buffer_load_dwordx2 %s, v12, s[32:35], 0 offen offset:%d" % (vr(WR+2*j, 2), 32*j))
    A("v_lshrrev_b32 v13, 2, v2")
    A("v_and_b32 v14, 3, v2")
    A("v_lshl_add_u32 v13, v3, 3, v13")
    A("v_mul_u32_u24 v15, 40, v13")
    A("v_lshl_add_u32 v15, v14, 3, v15")
    A("v_add_u32 v15, %d, v15" % LDS_KVB)
    A("v_mul_u32_u24 v13, 192, v13")
    A("v_lshl_add_u32 v13, v14, 3, v13")
    A("v_and_b32 v14, 1, v3")
    A("v_lshl_add_u32 v13, v14, 5, v13")
    A("v_add_u32 v14, 61440, v13")
    A.stamp(1)
    A("s_waitcnt vmcnt(0)")
    A.stamp(2)
    for i in range(26):
        if i == 0:
            A("v_mov_b32 v5, v8")
        else:
            A("v_add_u32 v5, %d, v8" % (25*i))
        A("v_bfe_u32 v7, v5, 3, 1")
        A("v_mul_u32_u24 v5, 192, v5")
        A("v_lshl_add_u32 v5, v7, 5, v5")
        A("v_add_u32 v5, v5, v9")
        A("ds_write_b128 v5, %s" % vr(WST+4*i, 4))
    if qkv:
        L2 = A.newlabel(name+"_nokvst")
        A("s_cmp_ge_u32 s37, 2")
        A("s_cbranch_scc1 %s" % L2)
        A("v_lshlrev_b32 v11, 4, v0")
        A("v_add_u32 v11, %d, v11" % LDS_KVB)
        for i in range(7):
            A("ds_write_b128 v11, %s offset:%d" % (vr(KVST+4*i, 4), 4096*i))
        A.label(L2)
    A("s_waitcnt lgkmcnt(0)")
    A("s_barrier")
    A.stamp(3)
    for i in range(4):
        A("v_mov_b32 v%d, 0x3f803f80" % (ONES+i))
    if qkv:
        for i in range(4):
            A("v_mov_b32 v%d, 0" % (ST+i))

    def trread(f, buf, base_regs, ntile, pitch_step, sec_step, tile_step):
        s, j = divmod(f, ntile)
        off = pitch_step*s + tile_step*j
        b = base_regs[0]
        if off + sec_step > 65535 - 0 and len(base_regs) > 1:
            pass
        if len(base_regs) > 1 and s >= 10:
            b = base_regs[1]; off -= 61440
        A("ds_read_b64_tr_b16 %s, v%d offset:%d" % (vr(buf, 2), b, off))
        A("ds_read_b64_tr_b16 %s, v%d offset:%d" % (vr(buf+2, 2), b, off+sec_step))

    def gemm_loop(ntile, acc, cs, base_regs, pitch_step, sec_step, tile_step, with_stats, tag):
        nf = 20*ntile
        P = 4
        for f in range(P):
            trread(f, AF+4*(f % NB), base_regs, ntile, pitch_step, sec_step, tile_step)
        dots = []
        if with_stats:
            for r in range(80):
                dots.append("v_dot2c_f32_bf16 v%d, v%d, v%d" % (ST + (r & 1), XF+r, ONES))
                dots.append("v_dot2c_f32_bf16 v%d, v%d, v%d" % (ST + 2 + (r & 1), XF+r, XF+r))
        di = 0
        for grp in range(4):
            Lno = A.newlabel(name+"_"+tag+"_nocs"); Lnx = A.newlabel(name+"_"+tag+"_nx")
            use_cs = cs is not None
            variants = [True, False] if use_cs else [False]
            if use_cs:
                A("s_cmp_lg_u32 s3, %d" % grp)
                A("s_cbranch_scc1 %s" % Lno)
            di0 = di
            for vi, docs in enumerate(variants):
                di = di0
                if vi == 1:
                    A.label(Lno)
                for f in range(grp*5*ntile, (grp+1)*5*ntile):
                    s, j = divmod(f, ntile)
                    if f + P < nf:
                        trread(f+P, AF+4*((f+P) % NB), base_regs, ntile, pitch_step, sec_step, tile_step)
                    rem = min(P, nf-1-f)
                    A("s_waitcnt lgkmcnt(%d)" % (2*rem))
                    c = "0" if s == 0 else vr(acc+4*j, 4)
                    A("v_mfma_f32_16x16x32_bf16 %s, %s, %s, %s" % (vr(acc+4*j, 4), vr(AF+4*(f % NB), 4), vr(XF+4*s, 4), c))
                    if docs:
                        c = "0" if s == grp*5 else vr(cs+4*j, 4)
                        A("v_mfma_f32_16x16x32_bf16 %s, %s, %s, %s" % (vr(cs+4*j, 4), vr(AF+4*(f % NB), 4), vr(ONES, 4), c))
                    for _ in range(2):
                        if di < len(dots):
                            A(dots[di]); di += 1
                if use_cs and vi == 0:
                    A("s_branch %s" % Lnx)
            if use_cs:
                A.label(Lnx)
    gemm_loop(5, ACC, CS if qkv else None, [13, 14], 6144, 768, 32, qkv, "m")
    if qkv:
        Lk = A.newlabel(name+"_nokvmm")
        A("s_cmp_ge_u32 s37, 2")
        A("s_cbranch_scc1 %s" % Lk)
        gemm_loop(2, ACCKV, CSKV, [15], 1280, 160, 32, False, "kv")
        A.label(Lk)
    A("s_nop 7")
    A("s_nop 3")
    A.stamp(4)
    if qkv:
        A("s_mul_i32 s39, s3, %d" % (7*64))
        A("v_lshlrev_b32 v5, 4, v3")
        A("v_add_u32 v5, s39, v5")
        A("v_add_u32 v5, %d, v5" % LDS_CSB)
        for j in range(7):
            A("ds_write_b128 v5, %s offset:%d" % (vr(CS+4*j, 4), 64*j))
        A("s_waitcnt lgkmcnt(0)")
        A("s_barrier")
        A("v_lshlrev_b32 v5, 4, v3")
        A("v_add_u32 v5, %d, v5" % LDS_CSB)
        A("v_add_f32 v%d, v%d, v%d" % (ST, ST, ST+1))
        A("v_add_f32 v%d, v%d, v%d" % (ST+2, ST+2, ST+3))
        reduce4groups(A, ST, T, T+1)
        reduce4groups(A, ST+2, T, T+1)
        A("v_mul_f32 v%d, 0x%x, v%d" % (ST, f32bits(1.0/640), ST))
        A("v_mul_f32 v%d, 0x%x, v%d" % (ST+2, f32bits(1.0/640), ST+2))
        A("v_fma_f32 v%d, -v%d, v%d, v%d" % (ST+2, ST, ST, ST+2))
        A("v_max_f32 v%d, 0, v%d" % (ST+2, ST+2))
        A("v_add_f32 v%d, 0x%x, v%d" % (ST+2, f32bits(1e-5), ST+2))
        A("v_rsq_f32 v%d, v%d" % (ST+1, ST+2))
        A("s_nop 0")
        A("v_mul_f32 v%d, 0x%x, v%d" % (ST+3, f32bits(QSCALE), ST+1))
        A("v_mul_u32_u24 v7, 1280, v6")
        A("s_mul_i32 s39, s37, 160")
        A("v_lshl_add_u32 v8, v3, 3, s39")
        A("v_add_u32 v7, v7, v8")
        def load_cs(j):
            for w in range(4):
                A("ds_read_b128 %s, v5 offset:%d" % (vr(T+4*w, 4), (w*7+j)*64))
            A("s_waitcnt lgkmcnt(0)")
            for r in range(4):
                A("v_add_f32 v%d, v%d, v%d" % (T+r, T+r, T+4+r))
                A("v_add_f32 v%d, v%d, v%d" % (T+8+r, T+8+r, T+12+r))
            for r in range(4):
                A("v_add_f32 v%d, v%d, v%d" % (T+r, T+r, T+8+r))
        def normalize(acc, scale_reg):
            for r in range(4):
                A("v_fma_f32 v%d, -v%d, v%d, v%d" % (acc+r, ST, T+r, acc+r))
            for r in range(4):
                A("v_mul_f32 v%d, v%d, v%d" % (acc+r, scale_reg, acc+r))
        for j in range(5):
            load_cs(j)
            normalize(ACC+4*j, ST+3)
            A("v_cvt_pk_bf16_f32 v%d, v%d, v%d" % (T+16, ACC+4*j, ACC+4*j+1))
            A("v_cvt_pk_bf16_f32 v%d, v%d, v%d" % (T+17, ACC+4*j+2, ACC+4*j+3))
            A("buffer_store_dwordx2 %s, v7, s[28:31], 0 offen offset:%d" % (vr(T+16, 2), 32*j))
            A("s_nop 1")
        Lv = A.newlabel(name+"_v"); Lz = A.newlabel(name+"_z")
        A("s_cmp_ge_u32 s37, 2")
        A("s_cbranch_scc1 %s" % Lz)
        load_cs(5); normalize(ACCKV, ST+1)
        load_cs(6); normalize(ACCKV+4, ST+1)
        A("v_lshrrev_b32 v8, 5, v6")
        A("v_mul_u32_u24 v8, 2560, v8")
        A("v_add_u32 v8, 0x%x, v8" % WS_KV)
        A("v_and_b32 v9, 31, v6")
        A("s_cmp_eq_u32 s37, 1")
        A("s_cbranch_scc1 %s" % Lv)
        A("v_cvt_pk_bf16_f32 v%d, v%d, v%d" % (T+16, ACCKV, ACCKV+1))
        A("v_cvt_pk_bf16_f32 v%d, v%d, v%d" % (T+17, ACCKV+2, ACCKV+3))
        A("v_cvt_pk_bf16_f32 v%d, v%d, v%d" % (T+18, ACCKV+4, ACCKV+5))
        A("v_cvt_pk_bf16_f32 v%d, v%d, v%d" % (T+19, ACCKV+6, ACCKV+7))
        A("v_lshrrev_b32 v10, 1, v3")
        A("v_lshl_add_u32 v10, v10, 5, v9")
        A("v_lshlrev_b32 v10, 4, v10")
        A("v_and_b32 v11, 1, v3")
        A("v_lshl_add_u32 v10, v11, 3, v10")
        A("v_add_u32 v10, v10, v8")
        A("buffer_store_dwordx2 %s, v10, s[28:31], 0 offen" % vr(T+16, 2))
        A("v_lshl_add_u32 v10, v9, 3, v8")
        A("v_cmp_eq_u32 vcc, 0, v3")
        A("s_and_saveexec_b64 s[40:41], vcc")
        A("buffer_store_dwordx2 %s, v10, s[28:31], 0 offen offset:1024" % vr(T+18, 2))
        A("s_mov_b64 exec, s[40:41]")
        A("v_mov_b32 v%d, 0" % (T+20))
        A("v_mov_b32 v%d, 0" % (T+21))
        A("v_dot2c_f32_bf16 v%d, v%d, v%d" % (T+20, T+16, T+16))
        A("v_dot2c_f32_bf16 v%d, v%d, v%d" % (T+21, T+18, T+18))
        A("v_dot2c_f32_bf16 v%d, v%d, v%d" % (T+20, T+17, T+17))
        A("v_dot2c_f32_bf16 v%d, v%d, v%d" % (T+21, T+19, T+19))
        A("s_nop 3")
        A("v_cndmask_b32 v%d, 0, v%d, vcc" % (T+21, T+21))
        A("v_add_f32 v%d, v%d, v%d" % (T+20, T+20, T+21))
        reduce4groups(A, T+20, T+22, T+23)
        for ror in (8, 4, 2, 1):
            A("s_nop 1")
            A("v_max_f32_dpp v%d, v%d, v%d row_ror:%d row_mask:0xf bank_mask:0xf" % (T+20, T+20, T+20, ror))
        A("s_lshl_b32 s39, s36, 2")
        A("s_add_u32 s39, s39, s3")
        A("s_lshl_b32 s39, s39, 2")
        A("s_add_u32 s39, s39, 0x%x" % WS_KN)
        A("v_mov_b32 v10, s39")
        A("buffer_store_dword v%d, v10, s[28:31], 0 offen" % (T+20))
        A("s_branch %s" % L_end)
        A.label(Lv)
        A("v_lshrrev_b32 v10, 4, v9")
        A("v_mul_u32_u24 v10, 640, v10")
        A("v_bfe_u32 v11, v9, 2, 1")
        A("v_mul_u32_u24 v11, 320, v11")
        A("v_add3_u32 v10, v10, v11, v8")
        A("v_and_b32 v11, 3, v9")
        A("v_lshl_add_u32 v10, v11, 1, v10")
        A("v_bfe_u32 v11, v9, 3, 1")
        A("v_lshl_add_u32 v10, v11, 3, v10")
        A("v_lshl_add_u32 v10, v3, 6, v10")
        A("v_cvt_pk_bf16_f32 v%d, v%d, v%d" % (T+16, ACCKV, ACCKV+1))
        A("v_cvt_pk_bf16_f32 v%d, v%d, v%d" % (T+17, ACCKV+2, ACCKV+3))
        A("v_cvt_pk_bf16_f32 v%d, v%d, v%d" % (T+18, ACCKV+4, ACCKV+5))
        A("v_cvt_pk_bf16_f32 v%d, v%d, v%d" % (T+19, ACCKV+6, ACCKV+7))
        A("buffer_store_short v%d, v10, s[28:31], 0 offen offset:1280" % (T+16))
        A("buffer_store_short_d16_hi v%d, v10, s[28:31], 0 offen offset:1296" % (T+16))
        A("buffer_store_short v%d, v10, s[28:31], 0 offen offset:1312" % (T+17))
        A("buffer_store_short_d16_hi v%d, v10, s[28:31], 0 offen offset:1328" % (T+17))
        A("v_cmp_eq_u32 vcc, 0, v3")
        A("s_and_saveexec_b64 s[40:41], vcc")
        A("buffer_store_short v%d, v10, s[28:31], 0 offen offset:1536" % (T+18))
        A("buffer_store_short_d16_hi v%d, v10, s[28:31], 0 offen offset:1552" % (T+18))
        A("buffer_store_short v%d, v10, s[28:31], 0 offen offset:1568" % (T+19))
        A("buffer_store_short_d16_hi v%d, v10, s[28:31], 0 offen offset:1584" % (T+19))
        A("s_mov_b64 exec, s[40:41]")
        A("s_branch %s" % L_end)
        A.label(Lz)
        A("s_cmp_lg_u32 s37, 2")
        A("s_cbranch_scc1 %s" % L_end)
        A("s_lshl_b32 s39, s36, 10")
        A("s_add_u32 s39, s39, 0x%x" % WS_ST)
        A("v_lshlrev_b32 v10, 4, v1")
        A("v_add_u32 v10, s39, v10")
        for r in range(4):
            A("v_mov_b32 v%d, 0" % (T+16+r))
        A("buffer_store_dwordx4 %s, v10, s[28:31], 0 offen" % vr(T+16, 4))
    else:
        for i in range(4):
            A("v_mov_b32 v%d, 0" % (ST+i))
        A("v_add_u32 v7, 0x%x, v11" % WS_H)
        for j in range(5):
            a = ACC+4*j
            A("v_cvt_pk_bf16_f32 v%d, v%d, v%d" % (T, a, a+1))
            A("v_cvt_pk_bf16_f32 v%d, v%d, v%d" % (T+1, a+2, a+3))
            for h in range(2):
                A("v_lshlrev_b32 v%d, 16, v%d" % (T+2+2*h, T+h))
                A("v_and_b32 v%d, 0xffff0000, v%d" % (T+3+2*h, T+h))
                A("v_lshlrev_b32 v%d, 16, v%d" % (T+6+2*h, XR+2*j+h))
                A("v_and_b32 v%d, 0xffff0000, v%d" % (T+7+2*h, XR+2*j+h))
            for r in range(4):
                A("v_add_f32 v%d, v%d, v%d" % (T+2+r, T+2+r, T+6+r))
            A("v_cvt_pk_bf16_f32 v%d, v%d, v%d" % (T+10, T+2, T+3))
            A("v_cvt_pk_bf16_f32 v%d, v%d, v%d" % (T+11, T+4, T+5))
            A("buffer_store_dwordx2 %s, v7, s[28:31], 0 offen offset:%d" % (vr(T+10, 2), 32*j))
            for h in range(2):
                A("v_dot2c_f32_bf16 v%d, v%d, v%d" % (ST, T+10+h, ONES))
                A("v_dot2c_f32_bf16 v%d, v%d, v%d" % (ST+1, T+10+h, T+10+h))
                A("v_dot2c_f32_bf16 v%d, v%d, v%d" % (ST+2, T+10+h, WR+2*j+h))
            A("s_nop 1")
        A("s_nop 3")
        reduce4groups(A, ST, T, T+1)
        reduce4groups(A, ST+1, T, T+1)
        reduce4groups(A, ST+2, T, T+1)
        A("v_cmp_eq_u32 vcc, 1, v3")
        A("s_nop 1")
        A("v_cndmask_b32 v%d, v%d, v%d, vcc" % (ST, ST, ST+1))
        A("v_cmp_eq_u32 vcc, 2, v3")
        A("s_nop 1")
        A("v_cndmask_b32 v%d, v%d, v%d, vcc" % (ST, ST, ST+2))
        A("v_cmp_eq_u32 vcc, 3, v3")
        A("s_nop 1")
        A("v_cndmask_b32 v%d, v%d, v%d, vcc" % (ST, ST, ST+3))
        A("v_lshlrev_b32 v8, 4, v6")
        A("v_lshl_add_u32 v8, v3, 2, v8")
        A("v_add_u32 v8, 0x%x, v8" % WS_ST)
        A("buffer_atomic_add_f32 v%d, v8, s[28:31], 0 offen" % ST)
    A.label(L_end)
    A.stamp(5)
    A.dump_stamps(28, WS_DBG + dbgoff)
    A.label(name + "_exit")
    A("s_endpgm")
    return kernel_header(name) + A.text() + kernel_desc(name, 256, 96 if stamps else 48)
```

```python
from common import *

L_W = 0
L_XR = 61440
L_KVW = 110592
LDS_GEMM2 = 139264
QSCALE = (20.0 ** -0.5) * math.log2(math.e)

def gen_gemm2(mode, name, stamps=False, dbgoff=0):
    A = Asm(); A.stamps = stamps
    qkv = (mode == 'qkv')
    L_end = name + "_end"
    AF = [16, 36]
    KF = [56, 64]
    XF = [72, 76]
    ACC = 80
    ACCKV = 100
    CS = 108
    CSKV = 128
    SX = 136; SQ = 140; ONES = 144
    XR = 148; WR = 158
    T = 168
    A("s_cmp_ge_u32 s2, 256")
    A("s_cbranch_scc1 %s_exit" % name)
    if qkv:
        A("s_load_dwordx2 s[4:5], s[0:1], %d" % KA_X)
        A("s_load_dwordx2 s[6:7], s[0:1], %d" % KA_WQ)
        A("s_load_dwordx2 s[8:9], s[0:1], %d" % KA_WK)
        A("s_load_dwordx2 s[10:11], s[0:1], %d" % KA_WV)
    else:
        A("s_load_dwordx2 s[6:7], s[0:1], %d" % KA_WO)
        A("s_load_dwordx2 s[8:9], s[0:1], %d" % KA_X)
        A("s_load_dwordx2 s[10:11], s[0:1], %d" % KA_WR)
    A("s_load_dwordx2 s[12:13], s[0:1], %d" % KA_WS)
    A("s_and_b32 s36, s2, 7")
    A("s_lshr_b32 s37, s2, 6")
    A("s_lshl_b32 s37, s37, 3")
    A("s_add_u32 s36, s36, s37")
    A("s_lshr_b32 s37, s2, 3")
    A("s_and_b32 s37, s37, 7")
    A("v_and_b32 v1, 63, v0")
    A("v_and_b32 v2, 15, v0")
    A("v_lshrrev_b32 v3, 4, v1")
    A("v_lshrrev_b32 v5, 6, v0")
    A("s_nop 0")
    A("v_readfirstlane_b32 s3, v5")
    A("s_lshl_b32 s38, s36, 6")
    A("s_lshl_b32 s39, s3, 4")
    A("s_add_u32 s38, s38, s39")
    A("v_add_u32 v6, s38, v2")
    A("v_lshrrev_b32 v7, 2, v1")
    A("v_bfe_u32 v8, v1, 4, 2")
    A("v_and_b32 v9, 3, v1")
    A("v_xor_b32 v8, v8, v9")
    A("v_add_u32 v7, s38, v7")
    A("v_mul_u32_u24 v7, 1280, v7")
    A("v_lshl_add_u32 v7, v8, 4, v7")
    if not qkv:
        A("v_add_u32 v7, 0x%x, v7" % WS_O)
    A("s_lshl_b32 s39, s3, 6")
    A("v_add_u32 v8, s39, v1")
    A("v_add_u32 v9, 256, v1")
    A("s_mul_i32 s39, s37, 160")
    for v in (8, 9):
        A("v_mul_u32_u24 v10, 0x199a, v%d" % v)
        A("v_lshrrev_b32 v10, 16, v10")
        A("v_mul_u32_u24 v11, 10, v10")
        A("v_sub_u32 v11, v%d, v11" % v)
        A("v_mul_u32_u24 v10, 1280, v10")
        A("v_lshl_add_u32 v10, v11, 4, v10")
        A("v_add_u32 v%d, s39, v10" % v)
    A("v_lshlrev_b32 v10, 4, v1")
    A("s_mul_i32 s39, s38, 1280")
    A("v_lshlrev_b32 v11, 7, v1")
    A("v_add_u32 v11, s39, v11")
    if not qkv:
        A("v_add_u32 v11, 0x%x, v11" % WS_O)
    A("s_waitcnt lgkmcnt(0)")
    A.stamp(0)
    srd(A, 28, 12, WS_END)
    if qkv:
        srd(A, 16, 4, ACT_BYTES)
    else:
        srd(A, 16, 12, WS_END)
    srd(A, 20, 6, D*D*2)
    if qkv:
        A("s_cmp_eq_u32 s37, 0")
        A("s_cselect_b32 s24, s8, s10")
        A("s_cselect_b32 s25, s9, s11")
        A("s_and_b32 s25, s25, 0xffff")
        A("s_mov_b32 s26, %d" % (D*DH*2))
        A("s_mov_b32 s27, 0x00020000")
        A("s_cmp_lt_u32 s37, 2")
        A("s_cselect_b32 s42, 0, 0x100000")
    else:
        srd(A, 24, 8, ACT_BYTES)
        srd(A, 32, 10, D*2)
    A("s_mul_i32 s43, s3, 12288")
    A("s_add_u32 s43, s43, %d" % L_XR)
    A("s_lshl_b32 s45, s3, 10")
    A("s_mul_i32 s46, s3, 5120")
    A("s_mul_i32 s47, s3, 40960")
    def dma_one(p, i):
        slot = p % 3
        if i < 4:
            s = 4*p + i
            A("s_add_u32 s40, s43, %d" % (slot*4096 + i*1024))
            A("s_mov_b32 m0, s40")
            A("s_movk_i32 s41, %d" % (64*s))
            A("buffer_load_dwordx4 v7, s[16:19], s41 offen lds")
        elif i < 8:
            a = 4*p + i - 4
            A("s_add_u32 s40, s45, %d" % (slot*20480 + (i-4)*5120))
            A("s_mov_b32 m0, s40")
            A("s_mov_b32 s41, %d" % (a*40960))
            A("buffer_load_dwordx4 v8, s[20:23], s41 offen lds")
        else:
            A("s_add_u32 s40, s46, %d" % (slot*20480 + 4096))
            A("s_mov_b32 m0, s40")
            A("s_add_u32 s41, s47, %d" % (4*p*40960))
            A("buffer_load_dwordx4 v9, s[20:23], s41 offen lds")
    def dma_phase(p):
        for i in range(9):
            dma_one(p, i)
    nfirst = 0
    if not qkv:
        A("v_mul_u32_u24 v12, 1280, v6")
        A("s_mul_i32 s39, s37, 160")
        A("v_lshl_add_u32 v13, v3, 3, s39")
        A("v_add_u32 v12, v12, v13")
    dma_phase(0)
    if qkv:
        for i in range(7):
            A("s_add_u32 s41, s45, %d" % (i*4096))
            A("s_add_u32 s40, s41, %d" % L_KVW)
            A("s_mov_b32 m0, s40")
            A("s_add_u32 s41, s41, s42")
            A("buffer_load_dwordx4 v10, s[24:27], s41 offen lds")
    dma_phase(1)
    A("v_lshrrev_b32 v14, 2, v2")
    A("v_and_b32 v15, 3, v2")
    A("v_lshl_add_u32 v14, v3, 2, v14")
    A("v_mul_u32_u24 v%d, 40, v14" % (T+8))
    A("v_lshl_add_u32 v%d, v15, 3, v%d" % (T+8, T+8))
    A("v_add_u32 v%d, %d, v%d" % (T+8, L_KVW, T+8))
    A("v_mul_u32_u24 v14, 160, v14")
    A("v_lshl_add_u32 v14, v15, 3, v14")
    A("v_add_u32 v15, 61440, v14")
    vKB = 4
    A("v_mov_b32 v4, v%d" % (T+8))
    vXA = [10, 11]
    A("v_lshrrev_b32 v%d, 1, v3" % (T+8))
    A("v_lshrrev_b32 v%d, 2, v2" % (T+9))
    A("v_xor_b32 v%d, v%d, v%d" % (T+8, T+8, T+9))
    A("v_xor_b32 v%d, 2, v%d" % (T+9, T+8))
    A("v_and_b32 v%d, 1, v3" % (T+10))
    A("v_lshlrev_b32 v%d, 3, v%d" % (T+10, T+10))
    A("v_lshl_add_u32 v%d, v2, 6, v%d" % (T+10, T+10))
    A("v_add_u32 v%d, s43, v%d" % (T+10, T+10))
    A("v_lshl_add_u32 v10, v%d, 4, v%d" % (T+8, T+10))
    A("v_lshl_add_u32 v11, v%d, 4, v%d" % (T+9, T+10))
    for i in range(4):
        A("v_mov_b32 v%d, 0x3f803f80" % (ONES+i))
    A.stamp(1)
    A("s_waitcnt vmcnt(9)")
    A("s_barrier")
    A.stamp(2)

    def reads(s):
        b = s & 1
        xo = ((s >> 2) % 3)*4096 + (s & 3)*1024
        A("ds_read_b64 %s, v%d offset:%d" % (vr(XF[b], 2), vXA[0], xo))
        A("ds_read_b64 %s, v%d offset:%d" % (vr(XF[b]+2, 2), vXA[1], xo))
        base, off = 14, ((s >> 2) % 3)*20480 + (s & 3)*5120
        for j in range(5):
            A("ds_read_b64_tr_b16 %s, v%d offset:%d" % (vr(AF[b]+4*j, 2), base, off+32*j))
            A("ds_read_b64_tr_b16 %s, v%d offset:%d" % (vr(AF[b]+4*j+2, 2), base, off+2560+32*j))
        if qkv:
            L = A.newlabel(name+"_nkr")
            A("s_cbranch_vccz %s" % L)
            for j in range(2):
                A("ds_read_b64_tr_b16 %s, v%d offset:%d" % (vr(KF[b]+4*j, 2), vKB, s*1280+32*j))
                A("ds_read_b64_tr_b16 %s, v%d offset:%d" % (vr(KF[b]+4*j+2, 2), vKB, s*1280+640+32*j))
            A.label(L)
    def mf(d, a, bb, first):
        A("v_mfma_f32_16x16x32_bf16 %s, %s, %s, %s" % (vr(d, 4), vr(a, 4), vr(bb, 4), "0" if first else vr(d, 4)))
    if qkv:
        A("s_cmp_lt_u32 s37, 2")
        A("s_cselect_b64 vcc, -1, 0")
    reads_done_kv = False
    reads(0)
    for s in range(20):
        b = s & 1
        A("s_waitcnt lgkmcnt(0)")
        p, ks = divmod(s, 4)
        if ks == 3 and p < 4:
            A("s_waitcnt vmcnt(%d)" % (7 if p <= 2 else 0))
            A("s_barrier")
        if p <= 2:
            for i in ([0, 1, 2], [3, 4], [5, 6], [7, 8])[ks]:
                dma_one(p+2, i)
        if s == 16 and not qkv:
            for j in range(5):
                A("buffer_load_dwordx2 %s, v12, s[24:27], 0 offen offset:%d" % (vr(XR+2*j, 2), 32*j))
            for j in range(5):
                A("buffer_load_dwordx2 %s, v13, s[32:35], 0 offen offset:%d" % (vr(WR+2*j, 2), 32*j))
        if s < 19:
            reads(s+1)
        for j in range(5):
            mf(ACC+4*j, AF[b]+4*j, XF[b], s == 0)
        if qkv:
            mf(SX, ONES, XF[b], s == 0)
            mf(SQ, XF[b], XF[b], s == 0)
            Lk = A.newlabel(name+"_nk"); Lc = A.newlabel(name+"_nc")
            A("s_cbranch_vccz %s" % Lk)
            for j in range(2):
                mf(ACCKV+4*j, KF[b]+4*j, XF[b], s == 0)
            A.label(Lk)
            A("s_cmp_lg_u32 s3, %d" % (s & 3))
            A("s_cbranch_scc1 %s" % Lc)
            for j in range(5):
                mf(CS+4*j, AF[b]+4*j, ONES, s < 4)
            for j in range(2):
                mf(CSKV+4*j, KF[b]+4*j, ONES, s < 4)
            A.label(Lc)
    A("s_nop 7")
    A("s_nop 3")
    A("s_waitcnt vmcnt(0)")
    A.stamp(3)
    if qkv:
        A("v_lshlrev_b32 v5, 4, v3")
        A("v_add_u32 v5, s43, v5")
        for j in range(7):
            A("ds_write_b128 v5, %s offset:%d" % (vr(CS+4*j, 4), 64*j))
        A("v_and_b32 v%d, 3, v2" % T)
        A("v_cmp_eq_u32 vcc, 1, v%d" % T)
        A("s_nop 1")
        A("v_cndmask_b32 v%d, v%d, v%d, vcc" % (SQ, SQ, SQ+1))
        A("v_cmp_eq_u32 vcc, 2, v%d" % T)
        A("s_nop 1")
        A("v_cndmask_b32 v%d, v%d, v%d, vcc" % (SQ, SQ, SQ+2))
        A("v_cmp_eq_u32 vcc, 3, v%d" % T)
        A("s_nop 1")
        A("v_cndmask_b32 v%d, v%d, v%d, vcc" % (SQ, SQ, SQ+3))
        A("v_lshrrev_b32 v%d, 2, v2" % T)
        A("v_cmp_eq_u32 vcc, v3, v%d" % T)
        A("s_nop 1")
        A("v_cndmask_b32 v%d, 0, v%d, vcc" % (SQ, SQ))
        reduce4groups(A, SQ, T, T+1)
        A("s_waitcnt lgkmcnt(0)")
        A("s_barrier")
        A("v_lshlrev_b32 v5, 4, v3")
        A("v_add_u32 v5, %d, v5" % L_XR)
        CR = T+8
        cr = lambda j: (CR+16*j) if j < 5 else (40+16*(j-5))
        for j in range(7):
            for w in range(4):
                A("ds_read_b128 %s, v5 offset:%d" % (vr(cr(j)+4*w, 4), w*12288+64*j))
        MEAN = SX; RS = SX+1; RSQ = SX+2
        A("v_mul_f32 v%d, 0x%x, v%d" % (MEAN, f32bits(1.0/640), SX))
        A("v_mul_f32 v%d, 0x%x, v%d" % (SQ, f32bits(1.0/640), SQ))
        A("v_fma_f32 v%d, -v%d, v%d, v%d" % (SQ, MEAN, MEAN, SQ))
        A("v_max_f32 v%d, 0, v%d" % (SQ, SQ))
        A("v_add_f32 v%d, 0x%x, v%d" % (SQ, f32bits(1e-5), SQ))
        A("v_rsq_f32 v%d, v%d" % (RS, SQ))
        A("s_nop 0")
        A("v_mul_f32 v%d, 0x%x, v%d" % (RSQ, f32bits(QSCALE), RS))
        A("v_mul_u32_u24 v7, 1280, v6")
        A("s_mul_i32 s39, s37, 160")
        A("v_lshl_add_u32 v8, v3, 3, s39")
        A("v_add_u32 v7, v7, v8")
        A("s_waitcnt lgkmcnt(0)")
        def normalize(j, acc, scale_reg):
            c = cr(j)
            for r in range(4):
                A("v_add_f32 v%d, v%d, v%d" % (c+r, c+r, c+4+r))
                A("v_add_f32 v%d, v%d, v%d" % (c+8+r, c+8+r, c+12+r))
            for r in range(4):
                A("v_add_f32 v%d, v%d, v%d" % (c+r, c+r, c+8+r))
            for r in range(4):
                A("v_fma_f32 v%d, -v%d, v%d, v%d" % (acc+r, MEAN, c+r, acc+r))
            for r in range(4):
                A("v_mul_f32 v%d, v%d, v%d" % (acc+r, scale_reg, acc+r))
        for j in range(5):
            normalize(j, ACC+4*j, RSQ)
            A("v_cvt_pk_bf16_f32 v%d, v%d, v%d" % (AF[0]+2*j, ACC+4*j, ACC+4*j+1))
            A("v_cvt_pk_bf16_f32 v%d, v%d, v%d" % (AF[0]+2*j+1, ACC+4*j+2, ACC+4*j+3))
            A("buffer_store_dwordx2 %s, v7, s[28:31], 0 offen offset:%d" % (vr(AF[0]+2*j, 2), 32*j))
        Lv = A.newlabel(name+"_v"); Lz = A.newlabel(name+"_z")
        A("s_cmp_ge_u32 s37, 2")
        A("s_cbranch_scc1 %s" % Lz)
        normalize(5, ACCKV, RS); normalize(6, ACCKV+4, RS)
        P4 = AF[1]
        A("v_cvt_pk_bf16_f32 v%d, v%d, v%d" % (P4, ACCKV, ACCKV+1))
        A("v_cvt_pk_bf16_f32 v%d, v%d, v%d" % (P4+1, ACCKV+2, ACCKV+3))
        A("v_cvt_pk_bf16_f32 v%d, v%d, v%d" % (P4+2, ACCKV+4, ACCKV+5))
        A("v_cvt_pk_bf16_f32 v%d, v%d, v%d" % (P4+3, ACCKV+6, ACCKV+7))
        A("v_lshrrev_b32 v8, 5, v6")
        A("v_mul_u32_u24 v8, 2560, v8")
        A("v_add_u32 v8, 0x%x, v8" % WS_KV)
        A("v_and_b32 v9, 31, v6")
        A("s_cmp_eq_u32 s37, 1")
        A("s_cbranch_scc1 %s" % Lv)
        A("v_lshrrev_b32 v10, 1, v3")
        A("v_lshl_add_u32 v10, v10, 5, v9")
        A("v_lshlrev_b32 v10, 4, v10")
        A("v_and_b32 v11, 1, v3")
        A("v_lshl_add_u32 v10, v11, 3, v10")
        A("v_add_u32 v10, v10, v8")
        A("buffer_store_dwordx2 %s, v10, s[28:31], 0 offen" % vr(P4, 2))
        A("v_lshl_add_u32 v10, v9, 3, v8")
        A("v_cmp_eq_u32 vcc, 0, v3")
        A("s_and_saveexec_b64 s[40:41], vcc")
        A("buffer_store_dwordx2 %s, v10, s[28:31], 0 offen offset:1024" % vr(P4+2, 2))
        A("s_mov_b64 exec, s[40:41]")
        A("v_mov_b32 v%d, 0" % (T))
        A("v_mov_b32 v%d, 0" % (T+1))
        A("v_dot2c_f32_bf16 v%d, v%d, v%d" % (T, P4, P4))
        A("v_dot2c_f32_bf16 v%d, v%d, v%d" % (T+1, P4+2, P4+2))
        A("v_dot2c_f32_bf16 v%d, v%d, v%d" % (T, P4+1, P4+1))
        A("v_dot2c_f32_bf16 v%d, v%d, v%d" % (T+1, P4+3, P4+3))
        A("s_nop 3")
        A("v_cndmask_b32 v%d, 0, v%d, vcc" % (T+1, T+1))
        A("v_add_f32 v%d, v%d, v%d" % (T, T, T+1))
        reduce4groups(A, T, T+2, T+3)
        for ror in (8, 4, 2, 1):
            A("s_nop 1")
            A("v_max_f32_dpp v%d, v%d, v%d row_ror:%d row_mask:0xf bank_mask:0xf" % (T, T, T, ror))
        A("s_lshl_b32 s39, s36, 2")
        A("s_add_u32 s39, s39, s3")
        A("s_lshl_b32 s39, s39, 2")
        A("s_add_u32 s39, s39, 0x%x" % WS_KN)
        A("v_mov_b32 v10, s39")
        A("buffer_store_dword v%d, v10, s[28:31], 0 offen" % T)
        A("s_branch %s" % L_end)
        A.label(Lv)
        A("v_lshrrev_b32 v10, 4, v9")
        A("v_mul_u32_u24 v10, 640, v10")
        A("v_bfe_u32 v11, v9, 2, 1")
        A("v_mul_u32_u24 v11, 320, v11")
        A("v_add3_u32 v10, v10, v11, v8")
        A("v_and_b32 v11, 3, v9")
        A("v_lshl_add_u32 v10, v11, 1, v10")
        A("v_bfe_u32 v11, v9, 3, 1")
        A("v_lshl_add_u32 v10, v11, 3, v10")
        A("v_lshl_add_u32 v10, v3, 6, v10")
        A("buffer_store_short v%d, v10, s[28:31], 0 offen offset:1280" % (P4))
        A("buffer_store_short_d16_hi v%d, v10, s[28:31], 0 offen offset:1296" % (P4))
        A("buffer_store_short v%d, v10, s[28:31], 0 offen offset:1312" % (P4+1))
        A("buffer_store_short_d16_hi v%d, v10, s[28:31], 0 offen offset:1328" % (P4+1))
        A("v_cmp_eq_u32 vcc, 0, v3")
        A("s_and_saveexec_b64 s[40:41], vcc")
        A("buffer_store_short v%d, v10, s[28:31], 0 offen offset:1536" % (P4+2))
        A("buffer_store_short_d16_hi v%d, v10, s[28:31], 0 offen offset:1552" % (P4+2))
        A("buffer_store_short v%d, v10, s[28:31], 0 offen offset:1568" % (P4+3))
        A("buffer_store_short_d16_hi v%d, v10, s[28:31], 0 offen offset:1584" % (P4+3))
        A("s_mov_b64 exec, s[40:41]")
        A("s_branch %s" % L_end)
        A.label(Lz)
        A("s_cmp_lg_u32 s37, 2")
        A("s_cbranch_scc1 %s" % L_end)
        A("s_lshl_b32 s39, s36, 10")
        A("s_add_u32 s39, s39, 0x%x" % WS_ST)
        A("v_lshlrev_b32 v10, 4, v1")
        A("v_add_u32 v10, s39, v10")
        for r in range(4):
            A("v_mov_b32 v%d, 0" % (T+r))
        A("buffer_store_dwordx4 %s, v10, s[28:31], 0 offen" % vr(T, 4))
    else:
        ST = SX
        for i in range(4):
            A("v_mov_b32 v%d, 0" % (ST+i))
        A("v_add_u32 v7, 0x%x, v12" % WS_H)
        for j in range(5):
            a = ACC+4*j
            U = T + 16*j
            A("v_cvt_pk_bf16_f32 v%d, v%d, v%d" % (U, a, a+1))
            A("v_cvt_pk_bf16_f32 v%d, v%d, v%d" % (U+1, a+2, a+3))
            for h in range(2):
                A("v_lshlrev_b32 v%d, 16, v%d" % (U+2+2*h, U+h))
                A("v_and_b32 v%d, 0xffff0000, v%d" % (U+3+2*h, U+h))
                A("v_lshlrev_b32 v%d, 16, v%d" % (U+6+2*h, XR+2*j+h))
                A("v_and_b32 v%d, 0xffff0000, v%d" % (U+7+2*h, XR+2*j+h))
            for r in range(4):
                A("v_add_f32 v%d, v%d, v%d" % (U+2+r, U+2+r, U+6+r))
            A("v_cvt_pk_bf16_f32 v%d, v%d, v%d" % (U+10, U+2, U+3))
            A("v_cvt_pk_bf16_f32 v%d, v%d, v%d" % (U+11, U+4, U+5))
            A("buffer_store_dwordx2 %s, v7, s[28:31], 0 offen offset:%d" % (vr(U+10, 2), 32*j))
            for h in range(2):
                A("v_dot2c_f32_bf16 v%d, v%d, v%d" % (ST, U+10+h, ONES))
                A("v_dot2c_f32_bf16 v%d, v%d, v%d" % (ST+1, U+10+h, U+10+h))
                A("v_dot2c_f32_bf16 v%d, v%d, v%d" % (ST+2, U+10+h, WR+2*j+h))
        A("s_nop 3")
        reduce4groups(A, ST, AF[0], AF[0]+1)
        reduce4groups(A, ST+1, AF[0], AF[0]+1)
        reduce4groups(A, ST+2, AF[0], AF[0]+1)
        for gi in (1, 2, 3):
            A("v_cmp_eq_u32 vcc, %d, v3" % gi)
            A("s_nop 1")
            A("v_cndmask_b32 v%d, v%d, v%d, vcc" % (ST, ST, ST+gi))
        A("v_lshlrev_b32 v8, 4, v6")
        A("v_lshl_add_u32 v8, v3, 2, v8")
        A("v_add_u32 v8, 0x%x, v8" % WS_ST)
        A("buffer_atomic_add_f32 v%d, v8, s[28:31], 0 offen" % ST)
    A.label(L_end)
    A.stamp(4)
    A.dump_stamps(28, WS_DBG + dbgoff)
    A.label(name + "_exit")
    A("s_endpgm")
    return kernel_header(name) + A.text() + kernel_desc(name, 296 if False else 256, 96 if stamps else 48)
```

```python
import sys
from common import *
import k_gemm, k_attn, k_tail, k_gemm2, k_tail2, k_tail3
HDR = open("sequential_preLN__grouped_kv_mqa__moe_arch_mod__prompt.s.ref").read().split("; Override launch")[0]
def build(parts, out):
    launches = []; bodies = []
    for p in parts:
        launches.append("; @launch kernel=%s grid=(%d,1,1) block=(%d,1,1) lds=%d" % (p[0], p[1], p[2], p[3]))
        bodies.append(p[4])
    txt = HDR + "\n".join(launches) + "\n" + '.amdgcn_target "amdgcn-amd-amdhsa--gfx950"\n' + "\n".join(bodies)
    open(out, "w").write(txt)
def parts(n, force_slow=False, stamps=False):
    ps = [("k1_kernel", 256, 256, k_gemm2.LDS_GEMM2, k_gemm2.gen_gemm2('qkv', "k1_kernel", stamps, 0))]
    if n >= 2: ps.append(("k2_kernel", 256, 512, k_attn.LDS_ATTN, k_attn.gen_attn("k2_kernel", force_slow, stamps, 0x80000)))
    if n >= 3: ps.append(("k3_kernel", 256, 256, k_gemm2.LDS_GEMM2, k_gemm2.gen_gemm2('oproj', "k3_kernel", stamps, 0x40000)))
    if n >= 4: ps.append(("k4_kernel", k_tail3.NR+k_tail3.NF, 512, k_tail3.LDS_TAIL, k_tail3.gen_k4f("k4_kernel", stamps, 0xc0000)))
    return ps
if __name__ == "__main__":
    build(parts(5), "k5.s")
    build(parts(5, stamps=True), "k5st.s")
    build(parts(5, force_slow=True), "k5slow.s")
    build(parts(5), "sequential_preLN__grouped_kv_mqa__moe_arch_mod__prompt.s")
```

```python
import math

S, D, H, DH, F = 2048, 640, 32, 20, 1728
KA_X, KA_WQ, KA_WK, KA_WV, KA_WO, KA_BX, KA_WR, KA_WG, KA_WU, KA_WD, KA_OUT, KA_DBG, KA_WS = [8*i for i in range(13)]
WS_Q   = 0x000000
WS_KV  = 0x280000
WS_KN  = 0x2A8000
WS_ST  = 0x2A9000
WS_O   = 0x300000
WS_H   = 0x580000
WS_GU  = 0x800000
WS_SEL = 0x810000
WS_Y = 0x811000
WS_DBG = 0x900000
WS_END = 0x1400000
ACT_BYTES = S*D*2

def f32bits(x):
    import struct
    return struct.unpack("<I", struct.pack("<f", x))[0]

class Asm:
    def __init__(self):
        self.lines = []
        self.nlabel = 0
    def __call__(self, s):
        for l in s.strip("\n").split("\n"):
            self.lines.append("    " + l.strip())
    def label(self, name):
        self.lines.append(name + ":")
    def newlabel(self, p="L"):
        self.nlabel += 1
        return "%s_%d" % (p, self.nlabel)
    def comment(self, s):
        self.lines.append("    ; " + s)
    def stamp(self, i):
        if getattr(self, "stamps", False):
            self("s_memtime s[%d:%d]" % (64+2*i, 65+2*i))
            self("s_waitcnt lgkmcnt(0)")
            self.nstamp = max(getattr(self, "nstamp", 0), i+1)
    def rstamp(self, i):
        if getattr(self, "stamps", False):
            self("s_memrealtime s[%d:%d]" % (64+2*i, 65+2*i))
            self("s_waitcnt lgkmcnt(0)")
            self.nstamp = max(getattr(self, "nstamp", 0), i+1)
    def dump_stamps(self, srdws, region):
        if not getattr(self, "stamps", False): return
        self("s_lshl_b32 s62, s2, 4")
        self("s_add_u32 s62, s62, s3")
        self("s_lshl_b32 s62, s62, 6")
        self("s_add_u32 s62, s62, 0x%x" % region)
        self("v_mov_b32 v250, s62")
        for i in range(self.nstamp):
            self("v_mov_b32 v251, s%d" % (64+2*i))
            self("buffer_store_dword v251, v250, s[%d:%d], 0 offen offset:%d" % (srdws, srdws+3, 4*i))
    def text(self):
        return "\n".join(self.lines) + "\n"

def vr(a, n=1):
    return "v%d" % a if n == 1 else "v[%d:%d]" % (a, a+n-1)
def sr(a, n=1):
    return "s%d" % a if n == 1 else "s[%d:%d]" % (a, a+n-1)

def srd(A, d, base, nbytes):
    A("s_mov_b32 s%d, s%d" % (d, base))
    A("s_and_b32 s%d, s%d, 0xffff" % (d+1, base+1))
    A("s_mov_b32 s%d, 0x%x" % (d+2, nbytes))
    A("s_mov_b32 s%d, 0x00020000" % (d+3))

def kernel_header(name):
    return """.text
.globl %s
.p2align 8
.type %s,@function
%s:
""" % (name, name, name)

def kernel_desc(name, vgpr, sgpr):
    acc = ((vgpr + 3)//4)*4
    return """.section .rodata,"a"
.p2align 6
.amdhsa_kernel %s
  .amdhsa_next_free_vgpr %d
  .amdhsa_next_free_sgpr %d
  .amdhsa_accum_offset %d
  .amdhsa_group_segment_fixed_size 0
  .amdhsa_kernarg_size 104
  .amdhsa_user_sgpr_count 2
  .amdhsa_user_sgpr_kernarg_segment_ptr 1
  .amdhsa_system_sgpr_workgroup_id_x 1
.end_amdhsa_kernel
""" % (name, vgpr, sgpr, acc)

def reduce4groups(A, v, t0, t1):
    A("v_mov_b32 v%d, v%d" % (t0, v))
    A("v_mov_b32 v%d, v%d" % (t1, v))
    A("s_nop 1")
    A("v_permlane32_swap_b32 v%d, v%d" % (t0, t1))
    A("s_nop 1")
    A("v_add_f32 v%d, v%d, v%d" % (v, t0, t1))
    A("v_mov_b32 v%d, v%d" % (t0, v))
    A("v_mov_b32 v%d, v%d" % (t1, v))
    A("s_nop 1")
    A("v_permlane16_swap_b32 v%d, v%d" % (t0, t1))
    A("s_nop 1")
    A("v_add_f32 v%d, v%d, v%d" % (v, t0, t1))
```

```python
from common import *
from k_tail import wave_sum

L_W = 0
L_XR = 61440
L_KVW = 110592
LDS_GEMM2 = 139264
QSCALE = (20.0 ** -0.5) * math.log2(math.e)

def gen_gemm2(mode, name, stamps=False, dbgoff=0):
    A = Asm(); A.stamps = stamps
    qkv = (mode == 'qkv')
    L_end = name + "_end"
    AF = [16, 36]
    KF = [56, 64]
    XF = [72, 76]
    ACC = 80
    ACCKV = 100
    CS = 108
    CSKV = 128
    SX = 136; SQ = 140; ONES = 144
    XR = 148; WR = 158
    T = 168
    A("s_cmp_ge_u32 s2, 256")
    A("s_cbranch_scc1 %s_exit" % name)
    if qkv:
        A("s_load_dwordx2 s[4:5], s[0:1], %d" % KA_X)
        A("s_load_dwordx2 s[6:7], s[0:1], %d" % KA_WQ)
        A("s_load_dwordx2 s[8:9], s[0:1], %d" % KA_WK)
        A("s_load_dwordx2 s[10:11], s[0:1], %d" % KA_WV)
        A("s_load_dwordx2 s[14:15], s[0:1], %d" % KA_WR)
    else:
        A("s_load_dwordx2 s[6:7], s[0:1], %d" % KA_WO)
        A("s_load_dwordx2 s[8:9], s[0:1], %d" % KA_X)
        A("s_load_dwordx2 s[10:11], s[0:1], %d" % KA_WR)
    A("s_load_dwordx2 s[12:13], s[0:1], %d" % KA_WS)
    A("s_and_b32 s36, s2, 7")
    A("s_lshr_b32 s37, s2, 6")
    A("s_lshl_b32 s37, s37, 3")
    A("s_add_u32 s36, s36, s37")
    A("s_lshr_b32 s37, s2, 3")
    A("s_and_b32 s37, s37, 7")
    A("v_and_b32 v1, 63, v0")
    A("v_and_b32 v2, 15, v0")
    A("v_lshrrev_b32 v3, 4, v1")
    A("v_lshrrev_b32 v5, 6, v0")
    A("s_nop 0")
    A("v_readfirstlane_b32 s3, v5")
    A("s_lshl_b32 s38, s36, 6")
    A("s_lshl_b32 s39, s3, 4")
    A("s_add_u32 s38, s38, s39")
    A("v_add_u32 v6, s38, v2")
    A("v_lshrrev_b32 v7, 2, v1")
    A("v_bfe_u32 v8, v1, 4, 2")
    A("v_and_b32 v9, 3, v1")
    A("v_xor_b32 v8, v8, v9")
    A("v_add_u32 v7, s38, v7")
    A("v_mul_u32_u24 v7, 1280, v7")
    A("v_lshl_add_u32 v7, v8, 4, v7")
    if not qkv:
        A("v_add_u32 v7, 0x%x, v7" % WS_O)
    A("s_lshl_b32 s39, s3, 6")
    A("v_add_u32 v8, s39, v1")
    A("v_add_u32 v9, 256, v1")
    A("s_mul_i32 s39, s37, 160")
    for v in (8, 9):
        A("v_mul_u32_u24 v10, 0x199a, v%d" % v)
        A("v_lshrrev_b32 v10, 16, v10")
        A("v_mul_u32_u24 v11, 10, v10")
        A("v_sub_u32 v11, v%d, v11" % v)
        A("v_mul_u32_u24 v10, 1280, v10")
        A("v_lshl_add_u32 v10, v11, 4, v10")
        A("v_add_u32 v%d, s39, v10" % v)
    A("v_lshlrev_b32 v10, 4, v1")
    A("s_mul_i32 s39, s38, 1280")
    A("v_lshlrev_b32 v11, 7, v1")
    A("v_add_u32 v11, s39, v11")
    if not qkv:
        A("v_add_u32 v11, 0x%x, v11" % WS_O)
    A("s_waitcnt lgkmcnt(0)")
    A.stamp(0)
    A.rstamp(6)
    srd(A, 28, 12, WS_END)
    if qkv:
        srd(A, 16, 4, ACT_BYTES)
    else:
        srd(A, 16, 12, WS_END)
    srd(A, 20, 6, D*D*2)
    if qkv:
        A("s_cmp_eq_u32 s37, 0")
        A("s_cselect_b32 s24, s8, s10")
        A("s_cselect_b32 s25, s9, s11")
        A("s_and_b32 s25, s25, 0xffff")
        A("s_mov_b32 s26, %d" % (D*DH*2))
        A("s_mov_b32 s27, 0x00020000")
        A("s_cmp_lt_u32 s37, 2")
        A("s_cselect_b32 s42, 0, 0x100000")
    else:
        srd(A, 24, 8, ACT_BYTES)
        srd(A, 32, 10, D*2)
    A("s_mul_i32 s43, s3, 12288")
    A("s_add_u32 s43, s43, %d" % L_XR)
    A("s_lshl_b32 s45, s3, 10")
    A("s_mul_i32 s46, s3, 5120")
    A("s_mul_i32 s47, s3, 40960")
    def dma_one(p, i):
        slot = p % 3
        if i < 4:
            s = 4*p + i
            A("s_add_u32 s40, s43, %d" % (slot*4096 + i*1024))
            A("s_mov_b32 m0, s40")
            A("s_movk_i32 s41, %d" % (64*s))
            A("buffer_load_dwordx4 v7, s[16:19], s41 offen lds")
        elif i < 8:
            a = 4*p + i - 4
            A("s_add_u32 s40, s45, %d" % (slot*20480 + (i-4)*5120))
            A("s_mov_b32 m0, s40")
            A("s_mov_b32 s41, %d" % (a*40960))
            A("buffer_load_dwordx4 v8, s[20:23], s41 offen lds")
        else:
            A("s_add_u32 s40, s46, %d" % (slot*20480 + 4096))
            A("s_mov_b32 m0, s40")
            A("s_add_u32 s41, s47, %d" % (4*p*40960))
            A("buffer_load_dwordx4 v9, s[20:23], s41 offen lds")
    def dma_phase(p):
        for i in range(9):
            dma_one(p, i)
    nfirst = 0
    if not qkv:
        A("v_mul_u32_u24 v12, 1280, v6")
        A("s_mul_i32 s39, s37, 160")
        A("v_lshl_add_u32 v13, v3, 3, s39")
        A("v_add_u32 v12, v12, v13")
    dma_phase(0)
    if qkv:
        for i in range(7):
            A("s_add_u32 s41, s45, %d" % (i*4096))
            A("s_add_u32 s40, s41, %d" % L_KVW)
            A("s_mov_b32 m0, s40")
            A("s_add_u32 s41, s41, s42")
            A("buffer_load_dwordx4 v10, s[24:27], s41 offen lds")
    dma_phase(1)
    A("v_lshrrev_b32 v14, 2, v2")
    A("v_and_b32 v15, 3, v2")
    A("v_lshl_add_u32 v14, v3, 2, v14")
    A("v_mul_u32_u24 v%d, 40, v14" % (T+8))
    A("v_lshl_add_u32 v%d, v15, 3, v%d" % (T+8, T+8))
    A("v_add_u32 v%d, %d, v%d" % (T+8, L_KVW, T+8))
    A("v_mul_u32_u24 v14, 160, v14")
    A("v_lshl_add_u32 v14, v15, 3, v14")
    A("v_add_u32 v15, 61440, v14")
    vKB = 4
    A("v_mov_b32 v4, v%d" % (T+8))
    vXA = [10, 11]
    A("v_lshrrev_b32 v%d, 1, v3" % (T+8))
    A("v_lshrrev_b32 v%d, 2, v2" % (T+9))
    A("v_xor_b32 v%d, v%d, v%d" % (T+8, T+8, T+9))
    A("v_xor_b32 v%d, 2, v%d" % (T+9, T+8))
    A("v_and_b32 v%d, 1, v3" % (T+10))
    A("v_lshlrev_b32 v%d, 3, v%d" % (T+10, T+10))
    A("v_lshl_add_u32 v%d, v2, 6, v%d" % (T+10, T+10))
    A("v_add_u32 v%d, s43, v%d" % (T+10, T+10))
    A("v_lshl_add_u32 v10, v%d, 4, v%d" % (T+8, T+10))
    A("v_lshl_add_u32 v11, v%d, 4, v%d" % (T+9, T+10))
    for i in range(4):
        A("v_mov_b32 v%d, 0x3f803f80" % (ONES+i))
    A.stamp(1)
    A("s_waitcnt vmcnt(9)")
    A("s_barrier")
    A.stamp(2)

    def reads(s):
        b = s & 1
        xo = ((s >> 2) % 3)*4096 + (s & 3)*1024
        A("ds_read_b64 %s, v%d offset:%d" % (vr(XF[b], 2), vXA[0], xo))
        A("ds_read_b64 %s, v%d offset:%d" % (vr(XF[b]+2, 2), vXA[1], xo))
        base, off = 14, ((s >> 2) % 3)*20480 + (s & 3)*5120
        for j in range(5):
            A("ds_read_b64_tr_b16 %s, v%d offset:%d" % (vr(AF[b]+4*j, 2), base, off+32*j))
            A("ds_read_b64_tr_b16 %s, v%d offset:%d" % (vr(AF[b]+4*j+2, 2), base, off+2560+32*j))
        if qkv:
            L = A.newlabel(name+"_nkr")
            A("s_cbranch_vccz %s" % L)
            for j in range(2):
                A("ds_read_b64_tr_b16 %s, v%d offset:%d" % (vr(KF[b]+4*j, 2), vKB, s*1280+32*j))
                A("ds_read_b64_tr_b16 %s, v%d offset:%d" % (vr(KF[b]+4*j+2, 2), vKB, s*1280+640+32*j))
            A.label(L)
    def mf(d, a, bb, first):
        A("v_mfma_f32_16x16x32_bf16 %s, %s, %s, %s" % (vr(d, 4), vr(a, 4), vr(bb, 4), "0" if first else vr(d, 4)))
    if qkv:
        A("s_cmp_lt_u32 s37, 2")
        A("s_cselect_b64 vcc, -1, 0")
    reads_done_kv = False
    reads(0)
    for s in range(20):
        b = s & 1
        A("s_waitcnt lgkmcnt(0)")
        p, ks = divmod(s, 4)
        if ks == 3 and p < 4:
            A("s_waitcnt vmcnt(%d)" % (7 if p <= 2 else 0))
            A("s_barrier")
        if p <= 2:
            for i in ([0, 1, 2], [3, 4], [5, 6], [7, 8])[ks]:
                dma_one(p+2, i)
        if s == 16 and not qkv:
            for j in range(5):
                A("buffer_load_dwordx2 %s, v12, s[24:27], 0 offen offset:%d" % (vr(XR+2*j, 2), 32*j))
            for j in range(5):
                A("buffer_load_dwordx2 %s, v13, s[32:35], 0 offen offset:%d" % (vr(WR+2*j, 2), 32*j))
        if s < 19:
            reads(s+1)
        for j in range(5):
            mf(ACC+4*j, AF[b]+4*j, XF[b], s == 0)
        if qkv:
            mf(SX, ONES, XF[b], s == 0)
            mf(SQ, XF[b], XF[b], s == 0)
            Lk = A.newlabel(name+"_nk"); Lc = A.newlabel(name+"_nc")
            A("s_cbranch_vccz %s" % Lk)
            for j in range(2):
                mf(ACCKV+4*j, KF[b]+4*j, XF[b], s == 0)
            A.label(Lk)
            A("s_cmp_lg_u32 s3, %d" % (s & 3))
            A("s_cbranch_scc1 %s" % Lc)
            for j in range(5):
                mf(CS+4*j, AF[b]+4*j, ONES, s < 4)
            for j in range(2):
                mf(CSKV+4*j, KF[b]+4*j, ONES, s < 4)
            A.label(Lc)
    A("s_nop 7")
    A("s_nop 3")
    A("s_waitcnt vmcnt(0)")
    A.stamp(3)
    if qkv:
        A("v_lshlrev_b32 v5, 4, v3")
        A("v_add_u32 v5, s43, v5")
        for j in range(7):
            A("ds_write_b128 v5, %s offset:%d" % (vr(CS+4*j, 4), 64*j))
        A("v_and_b32 v%d, 3, v2" % T)
        A("v_cmp_eq_u32 vcc, 1, v%d" % T)
        A("s_nop 1")
        A("v_cndmask_b32 v%d, v%d, v%d, vcc" % (SQ, SQ, SQ+1))
        A("v_cmp_eq_u32 vcc, 2, v%d" % T)
        A("s_nop 1")
        A("v_cndmask_b32 v%d, v%d, v%d, vcc" % (SQ, SQ, SQ+2))
        A("v_cmp_eq_u32 vcc, 3, v%d" % T)
        A("s_nop 1")
        A("v_cndmask_b32 v%d, v%d, v%d, vcc" % (SQ, SQ, SQ+3))
        A("v_lshrrev_b32 v%d, 2, v2" % T)
        A("v_cmp_eq_u32 vcc, v3, v%d" % T)
        A("s_nop 1")
        A("v_cndmask_b32 v%d, 0, v%d, vcc" % (SQ, SQ))
        reduce4groups(A, SQ, T, T+1)
        A("s_waitcnt lgkmcnt(0)")
        A("s_barrier")
        A("v_lshlrev_b32 v5, 4, v3")
        A("v_add_u32 v5, %d, v5" % L_XR)
        CR = T+8
        cr = lambda j: (CR+16*j) if j < 5 else (40+16*(j-5))
        for j in range(7):
            for w in range(4):
                A("ds_read_b128 %s, v5 offset:%d" % (vr(cr(j)+4*w, 4), w*12288+64*j))
        MEAN = SX; RS = SX+1; RSQ = SX+2
        A("v_mul_f32 v%d, 0x%x, v%d" % (MEAN, f32bits(1.0/640), SX))
        A("v_mul_f32 v%d, 0x%x, v%d" % (SQ, f32bits(1.0/640), SQ))
        A("v_fma_f32 v%d, -v%d, v%d, v%d" % (SQ, MEAN, MEAN, SQ))
        A("v_max_f32 v%d, 0, v%d" % (SQ, SQ))
        A("v_add_f32 v%d, 0x%x, v%d" % (SQ, f32bits(1e-5), SQ))
        A("v_rsq_f32 v%d, v%d" % (RS, SQ))
        A("s_nop 0")
        A("v_mul_f32 v%d, 0x%x, v%d" % (RSQ, f32bits(QSCALE), RS))
        A("v_mul_u32_u24 v7, 1280, v6")
        A("s_mul_i32 s39, s37, 160")
        A("v_lshl_add_u32 v8, v3, 3, s39")
        A("v_add_u32 v7, v7, v8")
        A("s_waitcnt lgkmcnt(0)")
        def normalize(j, acc, scale_reg):
            c = cr(j)
            for r in range(4):
                A("v_add_f32 v%d, v%d, v%d" % (c+r, c+r, c+4+r))
                A("v_add_f32 v%d, v%d, v%d" % (c+8+r, c+8+r, c+12+r))
            for r in range(4):
                A("v_add_f32 v%d, v%d, v%d" % (c+r, c+r, c+8+r))
            for r in range(4):
                A("v_fma_f32 v%d, -v%d, v%d, v%d" % (acc+r, MEAN, c+r, acc+r))
            for r in range(4):
                A("v_mul_f32 v%d, v%d, v%d" % (acc+r, scale_reg, acc+r))
        for j in range(5):
            normalize(j, ACC+4*j, RSQ)
            A("v_cvt_pk_bf16_f32 v%d, v%d, v%d" % (AF[0]+2*j, ACC+4*j, ACC+4*j+1))
            A("v_cvt_pk_bf16_f32 v%d, v%d, v%d" % (AF[0]+2*j+1, ACC+4*j+2, ACC+4*j+3))
            A("buffer_store_dwordx2 %s, v7, s[28:31], 0 offen offset:%d" % (vr(AF[0]+2*j, 2), 32*j))
        Lv = A.newlabel(name+"_v"); Lz = A.newlabel(name+"_z")
        A("s_cmp_ge_u32 s37, 2")
        A("s_cbranch_scc1 %s" % Lz)
        normalize(5, ACCKV, RS); normalize(6, ACCKV+4, RS)
        P4 = AF[1]
        A("v_cvt_pk_bf16_f32 v%d, v%d, v%d" % (P4, ACCKV, ACCKV+1))
        A("v_cvt_pk_bf16_f32 v%d, v%d, v%d" % (P4+1, ACCKV+2, ACCKV+3))
        A("v_cvt_pk_bf16_f32 v%d, v%d, v%d" % (P4+2, ACCKV+4, ACCKV+5))
        A("v_cvt_pk_bf16_f32 v%d, v%d, v%d" % (P4+3, ACCKV+6, ACCKV+7))
        A("v_lshrrev_b32 v8, 5, v6")
        A("v_mul_u32_u24 v8, 2560, v8")
        A("v_add_u32 v8, 0x%x, v8" % WS_KV)
        A("v_and_b32 v9, 31, v6")
        A("s_cmp_eq_u32 s37, 1")
        A("s_cbranch_scc1 %s" % Lv)
        A("v_lshrrev_b32 v10, 1, v3")
        A("v_lshl_add_u32 v10, v10, 5, v9")
        A("v_lshlrev_b32 v10, 4, v10")
        A("v_and_b32 v11, 1, v3")
        A("v_lshl_add_u32 v10, v11, 3, v10")
        A("v_add_u32 v10, v10, v8")
        A("buffer_store_dwordx2 %s, v10, s[28:31], 0 offen" % vr(P4, 2))
        A("v_lshl_add_u32 v10, v9, 3, v8")
        A("v_cmp_eq_u32 vcc, 0, v3")
        A("s_and_saveexec_b64 s[40:41], vcc")
        A("buffer_store_dwordx2 %s, v10, s[28:31], 0 offen offset:1024" % vr(P4+2, 2))
        A("s_mov_b64 exec, s[40:41]")
        A("v_mov_b32 v%d, 0" % (T))
        A("v_mov_b32 v%d, 0" % (T+1))
        A("v_dot2c_f32_bf16 v%d, v%d, v%d" % (T, P4, P4))
        A("v_dot2c_f32_bf16 v%d, v%d, v%d" % (T+1, P4+2, P4+2))
        A("v_dot2c_f32_bf16 v%d, v%d, v%d" % (T, P4+1, P4+1))
        A("v_dot2c_f32_bf16 v%d, v%d, v%d" % (T+1, P4+3, P4+3))
        A("s_nop 3")
        A("v_cndmask_b32 v%d, 0, v%d, vcc" % (T+1, T+1))
        A("v_add_f32 v%d, v%d, v%d" % (T, T, T+1))
        reduce4groups(A, T, T+2, T+3)
        for ror in (8, 4, 2, 1):
            A("s_nop 1")
            A("v_max_f32_dpp v%d, v%d, v%d row_ror:%d row_mask:0xf bank_mask:0xf" % (T, T, T, ror))
        A("s_lshl_b32 s39, s36, 2")
        A("s_add_u32 s39, s39, s3")
        A("s_lshl_b32 s39, s39, 2")
        A("s_add_u32 s39, s39, 0x%x" % WS_KN)
        A("v_mov_b32 v10, s39")
        A("buffer_store_dword v%d, v10, s[28:31], 0 offen" % T)
        A("s_branch %s" % L_end)
        A.label(Lv)
        A("v_lshrrev_b32 v10, 4, v9")
        A("v_mul_u32_u24 v10, 640, v10")
        A("v_bfe_u32 v11, v9, 2, 1")
        A("v_mul_u32_u24 v11, 320, v11")
        A("v_add3_u32 v10, v10, v11, v8")
        A("v_and_b32 v11, 3, v9")
        A("v_lshl_add_u32 v10, v11, 1, v10")
        A("v_bfe_u32 v11, v9, 3, 1")
        A("v_lshl_add_u32 v10, v11, 3, v10")
        A("v_lshl_add_u32 v10, v3, 6, v10")
        A("buffer_store_short v%d, v10, s[28:31], 0 offen offset:1280" % (P4))
        A("buffer_store_short_d16_hi v%d, v10, s[28:31], 0 offen offset:1296" % (P4))
        A("buffer_store_short v%d, v10, s[28:31], 0 offen offset:1312" % (P4+1))
        A("buffer_store_short_d16_hi v%d, v10, s[28:31], 0 offen offset:1328" % (P4+1))
        A("v_cmp_eq_u32 vcc, 0, v3")
        A("s_and_saveexec_b64 s[40:41], vcc")
        A("buffer_store_short v%d, v10, s[28:31], 0 offen offset:1536" % (P4+2))
        A("buffer_store_short_d16_hi v%d, v10, s[28:31], 0 offen offset:1552" % (P4+2))
        A("buffer_store_short v%d, v10, s[28:31], 0 offen offset:1568" % (P4+3))
        A("buffer_store_short_d16_hi v%d, v10, s[28:31], 0 offen offset:1584" % (P4+3))
        A("s_mov_b64 exec, s[40:41]")
        A("s_branch %s" % L_end)
        A.label(Lz)
        Lz2 = A.newlabel(name+"_z2")
        A("s_cmp_lg_u32 s2, 24")
        A("s_cbranch_scc1 %s" % Lz2)
        A("v_lshlrev_b32 v10, 4, v0")
        A("v_add_u32 v10, 0x%x, v10" % WS_Y)
        for r in range(4):
            A("v_mov_b32 v%d, 0" % (T+r))
        A("buffer_store_dwordx4 %s, v10, s[28:31], 0 offen" % vr(T, 4))
        srd(A, 32, 14, D*2)
        A("v_mul_u32_u24 v10, 20, v1")
        A("buffer_load_dwordx4 %s, v10, s[32:35], 0 offen" % vr(T+4, 4))
        A("buffer_load_dword v%d, v10, s[32:35], 0 offen offset:16" % (T+8))
        A("v_mov_b32 v%d, 0" % (T+9))
        A("s_waitcnt vmcnt(0)")
        for i in range(5):
            A("v_dot2c_f32_bf16 v%d, v%d, v%d" % (T+9, T+4+i, ONES))
        A("s_nop 3")
        wave_sum(A, T+9, T+10, T+11)
        A("v_mov_b32 v10, 0x%x" % WS_SEL)
        A("buffer_store_dword v%d, v10, s[28:31], 0 offen" % (T+9))
        A("s_branch %s" % L_end)
        A.label(Lz2)
        A("s_cmp_lg_u32 s37, 2")
        A("s_cbranch_scc1 %s" % L_end)
        A("s_lshl_b32 s39, s36, 10")
        A("s_add_u32 s39, s39, 0x%x" % WS_ST)
        A("v_lshlrev_b32 v10, 4, v1")
        A("v_add_u32 v10, s39, v10")
        for r in range(4):
            A("v_mov_b32 v%d, 0" % (T+r))
        A("buffer_store_dwordx4 %s, v10, s[28:31], 0 offen" % vr(T, 4))
    else:
        ST = SX
        for i in range(4):
            A("v_mov_b32 v%d, 0" % (ST+i))
        A("v_add_u32 v7, 0x%x, v12" % WS_H)
        for j in range(5):
            a = ACC+4*j
            U = T + 16*j
            A("v_cvt_pk_bf16_f32 v%d, v%d, v%d" % (U, a, a+1))
            A("v_cvt_pk_bf16_f32 v%d, v%d, v%d" % (U+1, a+2, a+3))
            for h in range(2):
                A("v_lshlrev_b32 v%d, 16, v%d" % (U+2+2*h, U+h))
                A("v_and_b32 v%d, 0xffff0000, v%d" % (U+3+2*h, U+h))
                A("v_lshlrev_b32 v%d, 16, v%d" % (U+6+2*h, XR+2*j+h))
                A("v_and_b32 v%d, 0xffff0000, v%d" % (U+7+2*h, XR+2*j+h))
            for r in range(4):
                A("v_add_f32 v%d, v%d, v%d" % (U+2+r, U+2+r, U+6+r))
            A("v_cvt_pk_bf16_f32 v%d, v%d, v%d" % (U+10, U+2, U+3))
            A("v_cvt_pk_bf16_f32 v%d, v%d, v%d" % (U+11, U+4, U+5))
            A("buffer_store_dwordx2 %s, v7, s[28:31], 0 offen offset:%d" % (vr(U+10, 2), 32*j))
            for h in range(2):
                A("v_dot2c_f32_bf16 v%d, v%d, v%d" % (ST, U+10+h, ONES))
                A("v_dot2c_f32_bf16 v%d, v%d, v%d" % (ST+1, U+10+h, U+10+h))
                A("v_dot2c_f32_bf16 v%d, v%d, v%d" % (ST+2, U+10+h, WR+2*j+h))
        A("s_nop 3")
        reduce4groups(A, ST, AF[0], AF[0]+1)
        reduce4groups(A, ST+1, AF[0], AF[0]+1)
        reduce4groups(A, ST+2, AF[0], AF[0]+1)
        for gi in (1, 2, 3):
            A("v_cmp_eq_u32 vcc, %d, v3" % gi)
            A("s_nop 1")
            A("v_cndmask_b32 v%d, v%d, v%d, vcc" % (ST, ST, ST+gi))
        A("v_lshlrev_b32 v8, 4, v6")
        A("v_lshl_add_u32 v8, v3, 2, v8")
        A("v_add_u32 v8, 0x%x, v8" % WS_ST)
        A("buffer_atomic_add_f32 v%d, v8, s[28:31], 0 offen" % ST)
    A.label(L_end)
    A.stamp(4)
    A.stamp(5)
    A.rstamp(7)
    A.dump_stamps(28, WS_DBG + dbgoff)
    A.label(name + "_exit")
    A("s_endpgm")
    return kernel_header(name) + A.text() + kernel_desc(name, 296 if False else 256, 96 if stamps else 48)
```

```python
from common import *
from k_tail import bf16r, ln_params, wave_sum, argmax_merge, unpack8, LOG2E
NF = 54
LDS_TAIL = 12288

def gen_k4f(name, stamps=False, dbgoff=0):
    A = Asm(); A.stamps = stamps
    L_end = name + "_end"; L_ffn = name + "_ffn"; L_rowsld = name + "_rowsld"; L_ld_done = name + "_lddone"
    STt = 16
    WRv = 48
    HC = 56
    RS = 68
    G = 56
    Uu = 96
    WD = 136
    T = 180
    U = 200
    A("s_cmp_ge_u32 s2, %d" % (NF+256))
    A("s_cbranch_scc1 %s_exit" % name)
    A("s_load_dwordx2 s[4:5], s[0:1], %d" % KA_WS)
    A("s_load_dwordx2 s[6:7], s[0:1], %d" % KA_OUT)
    A("s_load_dwordx2 s[24:25], s[0:1], %d" % KA_WR)
    A("s_load_dwordx4 s[28:31], s[0:1], %d" % KA_WG)
    A("s_load_dwordx2 s[26:27], s[0:1], %d" % KA_WD)
    A("s_load_dwordx2 s[32:33], s[0:1], %d" % KA_DBG)
    A("v_and_b32 v1, 63, v0")
    A("v_lshrrev_b32 v2, 6, v0")
    A("s_nop 0")
    A("v_readfirstlane_b32 s3, v2")
    A("s_waitcnt lgkmcnt(0)")
    A.stamp(0)
    srd(A, 8, 4, WS_END)
    srd(A, 12, 6, ACT_BYTES)
    srd(A, 16, 24, D*2)
    srd(A, 44, 28, D*F*2)
    srd(A, 48, 30, D*F*2)
    srd(A, 52, 26, D*F*2)
    srd(A, 56, 32, 256)
    A("v_lshlrev_b32 v3, 7, v0")
    A("v_add_u32 v3, 0x%x, v3" % WS_ST)
    for i in range(8):
        A("buffer_load_dwordx4 %s, v3, s[8:11], 0 offen offset:%d" % (vr(STt+4*i, 4), 16*i))
    A("v_mul_u32_u24 v3, 20, v1")
    A("buffer_load_dwordx4 %s, v3, s[16:19], 0 offen" % vr(WRv, 4))
    A("buffer_load_dword v%d, v3, s[16:19], 0 offen offset:16" % (WRv+4))
    A("s_cmp_ge_u32 s2, %d" % NF)
    A("s_cbranch_scc1 %s" % L_rowsld)
    A("v_lshrrev_b32 v8, 2, v0")
    A("v_and_b32 v9, 3, v0")
    A("v_mul_u32_u24 v10, 3456, v8")
    A("v_lshl_add_u32 v10, v9, 4, v10")
    A("s_lshl_b32 s35, s2, 6")
    A("v_add_u32 v10, s35, v10")
    for i in range(10):
        A("s_mov_b32 s35, %d" % (i*64*3456))
        A("buffer_load_dwordx4 %s, v10, s[44:47], s35 offen" % vr(G+4*i, 4))
        A("buffer_load_dwordx4 %s, v10, s[48:51], s35 offen" % vr(Uu+4*i, 4))
    A("v_min_u32 v4, 239, v0")
    A("v_mul_u32_u24 v5, 0x334, v4")
    A("v_lshrrev_b32 v5, 16, v5")
    A("v_mul_u32_u24 v6, 80, v5")
    A("v_sub_u32 v6, v4, v6")
    A("s_lshl_b32 s35, s2, 5")
    A("v_add_u32 v7, s35, v5")
    A("v_mul_u32_u24 v7, 1280, v7")
    A("v_lshl_add_u32 v7, v6, 4, v7")
    for i in range(11):
        A("s_mov_b32 s35, %d" % (i*3*1280))
        A("buffer_load_dwordx4 %s, v7, s[52:55], s35 offen" % vr(WD+4*i, 4))
    A("s_waitcnt vmcnt(31)")
    A("s_branch %s" % L_ld_done)
    A.label(L_rowsld)
    A("v_lshrrev_b32 v4, 5, v0")
    A("s_sub_u32 s34, s2, %d" % NF)
    A("s_lshl_b32 s34, s34, 3")
    A("v_add_u32 v4, s34, v4")
    A("v_and_b32 v5, 31, v0")
    A("v_mul_u32_u24 v6, 1280, v4")
    A("v_lshl_add_u32 v6, v5, 4, v6")
    A("v_add_u32 v7, 0x%x, v6" % WS_H)
    for i in range(3):
        A("buffer_load_dwordx4 %s, v7, s[8:11], 0 offen offset:%d" % (vr(HC+4*i, 4), 512*i))
    A("v_lshlrev_b32 v7, 4, v4")
    A("v_add_u32 v7, 0x%x, v7" % WS_ST)
    A("buffer_load_dwordx4 %s, v7, s[8:11], 0 offen" % vr(RS, 4))
    A("s_waitcnt vmcnt(4)")
    A.label(L_ld_done)
    A.stamp(1)
    A("v_mov_b32 v11, 0")
    A("v_mov_b32 v12, 0x3f803f80")
    for i in range(5):
        A("v_dot2c_f32_bf16 v11, v%d, v12" % (WRv+i))
    A("s_nop 3")
    wave_sum(A, 11, T, T+1)
    for i in range(8):
        s0 = STt+4*i
        ln_params(A, s0, s0+1, T, T+1, T+2)
        A("v_fma_f32 v%d, -v%d, v11, v%d" % (T+2, T, s0+2))
        A("v_mul_f32 v%d, v%d, v%d" % (T+2, T+2, T+1))
        if i == 0:
            A("v_mov_b32 v13, v%d" % (T+2))
            A("v_lshlrev_b32 v14, 3, v0")
        else:
            A("v_cmp_gt_f32 vcc, v%d, v13" % (T+2))
            A("v_lshl_add_u32 v%d, v0, 3, %d" % (T+3, i))
            A("s_nop 0")
            A("v_cndmask_b32 v13, v13, v%d, vcc" % (T+2))
            A("v_cndmask_b32 v14, v14, v%d, vcc" % (T+3))
    for ror in (8, 4, 2, 1):
        A("s_nop 1")
        A("v_mov_b32_dpp v%d, v13 row_ror:%d row_mask:0xf bank_mask:0xf" % (T, ror))
        A("v_mov_b32_dpp v%d, v14 row_ror:%d row_mask:0xf bank_mask:0xf" % (T+1, ror))
        argmax_merge(A, 13, 14, T, T+1)
    for sw in ("v_permlane16_swap_b32", "v_permlane32_swap_b32"):
        A("v_mov_b32 v%d, v13" % T)
        A("v_mov_b32 v%d, v13" % (T+1))
        A("v_mov_b32 v%d, v14" % (T+2))
        A("v_mov_b32 v%d, v14" % (T+3))
        A("s_nop 1")
        A("%s v%d, v%d" % (sw, T, T+1))
        A("%s v%d, v%d" % (sw, T+2, T+3))
        A("s_nop 1")
        A("v_mov_b32 v13, v%d" % T)
        A("v_mov_b32 v14, v%d" % (T+2))
        argmax_merge(A, 13, 14, T+1, T+3)
    A("s_lshl_b32 s35, s3, 3")
    A("v_mov_b32 v%d, s35" % T)
    A("v_mov_b32 v15, v14")
    A("v_mov_b32 v14, v13")
    A("ds_write_b64 v%d, v[14:15]" % T)
    A("s_waitcnt lgkmcnt(0)")
    A("s_barrier")
    A("v_mov_b32 v%d, 0" % T)
    A("ds_read_b128 %s, v%d" % (vr(T+4, 4), T))
    A("ds_read_b128 %s, v%d offset:16" % (vr(T+8, 4), T))
    A("s_waitcnt lgkmcnt(0)")
    A("v_mov_b32 v13, v%d" % (T+4))
    A("v_mov_b32 v14, v%d" % (T+5))
    for w in range(1, 4):
        argmax_merge(A, 13, 14, T+4+2*w, T+5+2*w)
    A("s_nop 0")
    A("v_readfirstlane_b32 s36, v14")
    A.stamp(2)
    A("s_cmp_lt_u32 s2, %d" % NF)
    A("s_cbranch_scc1 %s" % L_ffn)
    A("s_waitcnt vmcnt(0)")
    ln_params(A, RS, RS+1, U, U+1, U+2)
    A("v_cmp_ne_u32 s[38:39], s36, v4")
    for i in range(3):
        hc = HC+4*i
        unpack8(A, U+4, hc)
        for e in range(8):
            A("v_sub_f32 v%d, v%d, v%d" % (U+12+e, U+4+e, U))
        for q in range(4):
            A("v_cvt_pk_bf16_f32 v%d, v%d, v%d" % (U+20+q, U+12+2*q, U+13+2*q))
        unpack8(A, U+12, U+20)
        for e in range(8):
            A("v_mul_f32 v%d, v%d, v%d" % (U+12+e, U+1, U+12+e))
        for q in range(4):
            A("v_cvt_pk_bf16_f32 v%d, v%d, v%d" % (U+20+q, U+12+2*q, U+13+2*q))
        unpack8(A, U+12, U+20)
        for e in range(8):
            A("v_add_f32 v%d, v%d, v%d" % (U+12+e, U+4+e, U+12+e))
        for q in range(4):
            A("v_cvt_pk_bf16_f32 v%d, v%d, v%d" % (U+24+4*i+q, U+12+2*q, U+13+2*q))
    A("v_cmp_gt_u32 vcc, 16, v5")
    A("s_nop 3")
    A("s_and_b64 vcc, vcc, s[38:39]")
    A("s_mov_b64 exec, s[38:39]")
    Lsk = A.newlabel(name+"_sk")
    A("s_cbranch_execz %s" % Lsk)
    A("buffer_store_dwordx4 %s, v6, s[12:15], 0 offen" % vr(U+24, 4))
    A("buffer_store_dwordx4 %s, v6, s[12:15], 0 offen offset:512" % vr(U+28, 4))
    A("s_mov_b64 exec, vcc")
    A("buffer_store_dwordx4 %s, v6, s[12:15], 0 offen offset:1024" % vr(U+32, 4))
    A.label(Lsk)
    A("s_mov_b64 exec, -1")
    A("s_branch %s" % L_end)
    A.label(L_ffn)
    XS = STt
    A("s_mul_i32 s37, s36, 1280")
    A("s_add_u32 s35, s37, 0x%x" % WS_H)
    A("v_lshlrev_b32 v%d, 1, v8" % T)
    A("v_add_u32 v%d, s35, v%d" % (T, T))
    for i in range(10):
        A("buffer_load_ushort v%d, v%d, s[8:11], 0 offen offset:%d" % (XS+i, T, 128*i))
    A("s_lshl_b32 s35, s36, 4")
    A("s_add_u32 s35, s35, 0x%x" % WS_ST)
    A("v_mov_b32 v%d, s35" % (T+1))
    A("buffer_load_dwordx4 v[28:31], v%d, s[8:11], 0 offen" % (T+1))
    AC = 32
    for e in range(16):
        A("v_mov_b32 v%d, 0" % (AC+e))
    A("s_waitcnt vmcnt(0)")
    MB = 52; RI = 53
    ln_params(A, 28, 29, MB, RI, T+2)
    for i in range(10):
        x = XS+i
        A("v_lshlrev_b32 v%d, 16, v%d" % (x, x))
        A("v_sub_f32 v%d, v%d, v%d" % (x, x, MB))
        bf16r(A, x, x)
        A("v_mul_f32 v%d, v%d, v%d" % (x, RI, x))
        bf16r(A, x, x)
        unpack8(A, T, G+4*i)
        for e in range(8):
            A("v_fmac_f32 v%d, v%d, v%d" % (AC+e, x, T+e))
        unpack8(A, T+8, Uu+4*i)
        for e in range(8):
            A("v_fmac_f32 v%d, v%d, v%d" % (AC+8+e, x, T+8+e))
    A("s_nop 1")
    for i in range(8):
        A("v_permlane32_swap_b32 v%d, v%d" % (AC+i, AC+8+i))
    A("s_nop 1")
    for i in range(8):
        A("v_add_f32 v%d, v%d, v%d" % (AC+i, AC+i, AC+8+i))
    A("s_nop 1")
    for i in range(4):
        A("v_permlane16_swap_b32 v%d, v%d" % (AC+i, AC+4+i))
    A("s_nop 1")
    for i in range(4):
        A("v_add_f32 v%d, v%d, v%d" % (AC+i, AC+i, AC+4+i))
    for ror in (8, 4):
        A("s_nop 1")
        for i in range(4):
            A("v_add_f32_dpp v%d, v%d, v%d row_ror:%d row_mask:0xf bank_mask:0xf" % (AC+4+i, AC+i, AC+i, ror))
        for i in range(4):
            A("v_mov_b32 v%d, v%d" % (AC+i, AC+4+i))
    A("v_lshrrev_b32 v%d, 5, v1" % T)
    A("v_lshlrev_b32 v%d, 7, v%d" % (T, T))
    A("v_bfe_u32 v%d, v1, 4, 1" % (T+1))
    A("v_lshl_add_u32 v%d, v%d, 4, v%d" % (T, T+1, T))
    A("v_lshl_add_u32 v%d, v9, 5, v%d" % (T, T))
    A("s_lshl_b32 s35, s3, 8")
    A("v_add_u32 v%d, s35, v%d" % (T, T))
    A("ds_write_b128 v%d, %s offset:64" % (T, vr(AC, 4)))
    A("s_waitcnt lgkmcnt(0)")
    A("s_barrier")
    A("v_and_b32 v%d, 31, v0" % T)
    A("v_lshlrev_b32 v%d, 2, v%d" % (T, T))
    for w in range(4):
        A("ds_read_b32 v%d, v%d offset:%d" % (T+4+w, T, 64+256*w))
        A("ds_read_b32 v%d, v%d offset:%d" % (T+8+w, T, 64+256*w+128))
    A("s_waitcnt lgkmcnt(0)")
    g = T+4; u = T+8
    for b in (g, u):
        A("v_add_f32 v%d, v%d, v%d" % (b, b, b+1))
        A("v_add_f32 v%d, v%d, v%d" % (b+2, b+2, b+3))
        A("v_add_f32 v%d, v%d, v%d" % (b, b, b+2))
        bf16r(A, b, b)
    A("v_mul_f32 v%d, 0x%x, v%d" % (g+1, f32bits(-LOG2E), g))
    A("v_exp_f32 v%d, v%d" % (g+1, g+1))
    A("s_nop 0")
    A("v_add_f32 v%d, 1.0, v%d" % (g+1, g+1))
    A("v_rcp_f32 v%d, v%d" % (g+1, g+1))
    A("s_nop 0")
    A("v_mul_f32 v%d, v%d, v%d" % (g, g, g+1))
    bf16r(A, g, g)
    A("v_mul_f32 v%d, v%d, v%d" % (g, g, u))
    bf16r(A, g, g)
    A("ds_write_b32 v%d, v%d offset:1280" % (T, g))
    A("v_mov_b32 v%d, 0" % (g+1))
    A("v_mov_b32 v%d, 1408" % (T+1))
    A("ds_write_b32 v%d, v%d" % (T+1, g+1))
    A("s_waitcnt lgkmcnt(0)")
    A("s_barrier")
    A("v_lshlrev_b32 v%d, 2, v5" % T)
    for i in range(11):
        A("ds_read_b32 v%d, v%d offset:%d" % (XS+i, T, 1280+12*i))
    for e in range(8):
        A("v_mov_b32 v%d, 0" % (AC+e))
    A("s_waitcnt lgkmcnt(0)")
    for i in range(11):
        unpack8(A, T, WD+4*i)
        for e in range(8):
            A("v_fmac_f32 v%d, v%d, v%d" % (AC+e, XS+i, T+e))
    A("v_mul_u32_u24 v%d, 2560, v5" % T)
    A("v_lshl_add_u32 v%d, v6, 5, v%d" % (T, T))
    A("ds_write_b128 v%d, %s offset:2048" % (T, vr(AC, 4)))
    A("ds_write_b128 v%d, %s offset:2064" % (T, vr(AC+4, 4)))
    A("s_waitcnt lgkmcnt(0)")
    A("s_barrier")
    A("v_lshlrev_b32 v%d, 2, v0" % T)
    for q in range(3):
        for rg in range(3):
            A("ds_read_b32 v%d, v%d offset:%d" % (T+4+3*q+rg, T, 2048+rg*2560+q*1024))
    A("s_waitcnt lgkmcnt(0)")
    A("v_add_u32 v%d, 0x%x, v%d" % (T, WS_Y, T))
    for q in range(3):
        b = T+4+3*q
        A("v_add_f32 v%d, v%d, v%d" % (b, b, b+1))
        A("v_add_f32 v%d, v%d, v%d" % (b, b, b+2))
    A("buffer_atomic_add_f32 v%d, v%d, s[8:11], 0 offen" % (T+4, T))
    A("buffer_atomic_add_f32 v%d, v%d, s[8:11], 0 offen offset:1024" % (T+7, T))
    A("s_cmp_ge_u32 s3, 2")
    Lna = A.newlabel(name+"_na")
    A("s_cbranch_scc1 %s" % Lna)
    A("buffer_atomic_add_f32 v%d, v%d, s[8:11], 0 offen offset:2048" % (T+10, T))
    A.label(Lna)
    A.stamp(3)
    A("s_waitcnt vmcnt(0)")
    A("s_barrier")
    A("s_cmp_lg_u32 s3, 0")
    A("s_cbranch_scc1 %s" % L_end)
    A("v_mov_b32 v%d, 1" % T)
    A("v_mov_b32 v%d, 0" % (T+1))
    A("s_mov_b64 exec, 1")
    A("buffer_atomic_add v%d, v%d, s[56:59], 0 offen sc0 sc1" % (T, T+1))
    A("s_waitcnt vmcnt(0)")
    A("s_mov_b64 exec, -1")
    A("v_readfirstlane_b32 s35, v%d" % T)
    A("s_nop 3")
    A("s_cmp_lg_u32 s35, %d" % (NF-1))
    A("s_cbranch_scc1 %s" % L_end)
    A("buffer_inv sc1")
    A("s_waitcnt vmcnt(0)")
    A("v_lshlrev_b32 v%d, 3, v1" % T)
    A("v_add_u32 v%d, 0x%x, v%d" % (T, WS_Y, T))
    for i in range(5):
        A("buffer_load_dwordx2 %s, v%d, s[8:11], 0 offen offset:%d sc0 sc1" % (vr(56+2*i, 2), T, 512*i))
    A("v_lshlrev_b32 v%d, 2, v1" % (T+1))
    A("v_add_u32 v%d, s37, v%d" % (T+1, T+1))
    A("v_add_u32 v%d, 0x%x, v%d" % (T+2, WS_H, T+1))
    for i in range(5):
        A("buffer_load_dword v%d, v%d, s[8:11], 0 offen offset:%d" % (70+i, T+2, 256*i))
    bf16r(A, 13, 13)
    A("v_mul_f32 v13, 0x%x, v13" % f32bits(-LOG2E))
    A("v_exp_f32 v13, v13")
    A("s_nop 0")
    A("v_add_f32 v13, 1.0, v13")
    A("v_rcp_f32 v13, v13")
    A("s_nop 0")
    bf16r(A, 13, 13)
    A("s_waitcnt vmcnt(0)")
    for i in range(5):
        A("v_lshlrev_b32 v%d, 16, v%d" % (T+4, 70+i))
        A("v_and_b32 v%d, 0xffff0000, v%d" % (T+5, 70+i))
        for e in range(2):
            y = 56+2*i+e; h = T+4+e; t = T+6
            bf16r(A, y, y)
            A("v_mul_f32 v%d, v13, v%d" % (y, y))
            bf16r(A, y, y)
            A("v_sub_f32 v%d, v%d, v%d" % (t, h, MB))
            bf16r(A, t, t)
            A("v_mul_f32 v%d, v%d, v%d" % (t, RI, t))
            bf16r(A, t, t)
            A("v_add_f32 v%d, v%d, v%d" % (t, t, y))
            bf16r(A, t, t)
            A("v_add_f32 v%d, v%d, v%d" % (y, h, t))
        A("v_cvt_pk_bf16_f32 v%d, v%d, v%d" % (80+i, 56+2*i, 57+2*i))
        A("buffer_store_dword v%d, v%d, s[12:15], 0 offen offset:%d" % (80+i, T+1, 256*i))
    A.label(L_end)
    A.stamp(4)
    A.dump_stamps(8, WS_DBG + dbgoff)
    A.label(name + "_exit")
    A("s_endpgm")
    return kernel_header(name) + A.text() + kernel_desc(name, 256 if stamps else 240, 96 if stamps else 64)
```

```python
from common import *
from k_tail import bf16r, ln_params, wave_sum, argmax_merge, unpack8, LOG2E
NF = 54
NR = 128
LDS_TAIL = 20480

def gen_k4f(name, stamps=False, dbgoff=0):
    A = Asm(); A.stamps = stamps
    L_end = name + "_end"; L_ffn = name + "_ffn"; L_rowsld = name + "_rowsld"; L_ld_done = name + "_lddone"
    STt = 16
    WRv = 32
    HC = 40
    RS = 52
    G = 40
    Uu = 60
    WD = 80
    T = 104
    U = 56
    A("s_cmp_ge_u32 s2, %d" % (NF+NR))
    A("s_cbranch_scc1 %s_exit" % name)
    A("s_load_dwordx2 s[4:5], s[0:1], %d" % KA_WS)
    A("s_load_dwordx4 s[20:23], s[0:1], %d" % KA_OUT)
    A("s_load_dwordx4 s[24:27], s[0:1], %d" % KA_WR)
    A("s_load_dwordx4 s[28:31], s[0:1], %d" % KA_WU)
    A("v_and_b32 v1, 63, v0")
    A("v_lshrrev_b32 v2, 6, v0")
    A("v_lshlrev_b32 v3, 6, v0")
    A("v_readfirstlane_b32 s3, v2")
    A("v_add_u32 v3, 0x%x, v3" % WS_ST)
    A("v_mov_b32 v4, 0x%x" % WS_SEL)
    A("s_waitcnt lgkmcnt(0)")
    A.stamp(0)
    srd(A, 8, 4, WS_END)
    for i in range(4):
        A("buffer_load_dwordx4 %s, v3, s[8:11], 0 offen offset:%d" % (vr(STt+4*i, 4), 16*i))
    A("buffer_load_dword v11, v4, s[8:11], 0 offen")
    srd(A, 12, 20, ACT_BYTES)
    A("s_cmp_ge_u32 s2, %d" % NF)
    A("s_cbranch_scc1 %s" % L_rowsld)
    srd(A, 44, 26, D*F*2)
    srd(A, 48, 28, D*F*2)
    srd(A, 52, 30, D*F*2)
    srd(A, 56, 22, 256)
    A("v_lshrrev_b32 v8, 2, v0")
    A("v_and_b32 v9, 3, v0")
    A("v_mul_u32_u24 v10, 3456, v8")
    A("v_lshl_add_u32 v10, v9, 4, v10")
    A("s_lshl_b32 s35, s2, 6")
    A("v_add_u32 v10, s35, v10")
    for i in range(5):
        A("s_mov_b32 s35, %d" % (i*128*3456))
        A("buffer_load_dwordx4 %s, v10, s[44:47], s35 offen" % vr(G+4*i, 4))
        A("buffer_load_dwordx4 %s, v10, s[48:51], s35 offen" % vr(Uu+4*i, 4))
    A("v_min_u32 v4, 479, v0")
    A("v_mul_u32_u24 v5, 0x334, v4")
    A("v_lshrrev_b32 v5, 16, v5")
    A("v_mul_u32_u24 v6, 80, v5")
    A("v_sub_u32 v6, v4, v6")
    A("s_lshl_b32 s35, s2, 5")
    A("v_add_u32 v7, s35, v5")
    A("v_mul_u32_u24 v7, 1280, v7")
    A("v_lshl_add_u32 v7, v6, 4, v7")
    for i in range(6):
        A("s_mov_b32 s35, %d" % (i*6*1280))
        A("buffer_load_dwordx4 %s, v7, s[52:55], s35 offen" % vr(WD+4*i, 4))
    A("s_waitcnt vmcnt(16)")
    A("s_branch %s" % L_ld_done)
    A.label(L_rowsld)
    A("v_lshrrev_b32 v4, 5, v0")
    A("s_sub_u32 s34, s2, %d" % NF)
    A("s_lshl_b32 s34, s34, 4")
    A("v_add_u32 v4, s34, v4")
    A("v_and_b32 v5, 31, v0")
    A("v_mul_u32_u24 v6, 1280, v4")
    A("v_lshl_add_u32 v6, v5, 4, v6")
    A("v_add_u32 v7, 0x%x, v6" % WS_H)
    for i in range(3):
        A("buffer_load_dwordx4 %s, v7, s[8:11], 0 offen offset:%d" % (vr(HC+4*i, 4), 512*i))
    A("v_lshlrev_b32 v7, 4, v4")
    A("v_add_u32 v7, 0x%x, v7" % WS_ST)
    A("buffer_load_dwordx4 %s, v7, s[8:11], 0 offen" % vr(RS, 4))
    A("s_waitcnt vmcnt(4)")
    A.label(L_ld_done)
    A.stamp(1)
    A("v_lshlrev_b32 v14, 2, v0")
    A("v_sub_u32 v14, 2047, v14")
    A("s_mov_b32 s40, 0xfffff800")
    for i in range(4):
        s0 = STt+4*i
        A("v_mul_f32 v%d, 0x%x, v%d" % (T, f32bits(1.0/640), s0))
        A("v_mul_f32 v%d, 0x%x, v%d" % (T+1, f32bits(1.0/640), s0+1))
        A("v_fma_f32 v%d, -v%d, v%d, v%d" % (T+1, T, T, T+1))
        A("v_max_f32 v%d, 0, v%d" % (T+1, T+1))
        A("v_add_f32 v%d, 0x%x, v%d" % (T+1, f32bits(1e-5), T+1))
        A("v_rsq_f32 v%d, v%d" % (T+1, T+1))
        A("v_fma_f32 v%d, -v%d, v11, v%d" % (T+2, T, s0+2))
        A("v_mul_f32 v%d, v%d, v%d" % (T+2, T+2, T+1))
        A("v_ashrrev_i32 v%d, 31, v%d" % (T+3, T+2))
        A("v_or_b32 v%d, 0x80000000, v%d" % (T+3, T+3))
        A("v_xor_b32 v%d, v%d, v%d" % (T+2, T+2, T+3))
        A("v_subrev_u32 v%d, %d, v14" % (T+3, i))
        A("v_and_or_b32 v%d, v%d, s40, v%d" % (T+2, T+2, T+3))
        if i == 0:
            A("v_mov_b32 v13, v%d" % (T+2))
        else:
            A("v_max_u32 v13, v13, v%d" % (T+2))
    for ror in (8, 4, 2, 1):
        A("s_nop 1")
        A("v_max_u32_dpp v13, v13, v13 row_ror:%d row_mask:0xf bank_mask:0xf" % ror)
    for sw in ("v_permlane16_swap_b32", "v_permlane32_swap_b32"):
        A("v_mov_b32 v%d, v13" % T)
        A("v_mov_b32 v%d, v13" % (T+1))
        A("s_nop 1")
        A("%s v%d, v%d" % (sw, T, T+1))
        A("s_nop 1")
        A("v_max_u32 v13, v%d, v%d" % (T, T+1))
    A("s_lshl_b32 s35, s3, 2")
    A("v_mov_b32 v%d, s35" % T)
    A("ds_write_b32 v%d, v13" % T)
    A("s_waitcnt lgkmcnt(0)")
    A("s_barrier")
    A("v_mov_b32 v%d, 0" % T)
    A("ds_read_b128 %s, v%d" % (vr(T+4, 4), T))
    A("ds_read_b128 %s, v%d offset:16" % (vr(T+8, 4), T))
    A("s_waitcnt lgkmcnt(0)")
    A("v_max3_u32 v13, v%d, v%d, v%d" % (T+4, T+5, T+6))
    A("v_max3_u32 v13, v13, v%d, v%d" % (T+7, T+8))
    A("v_max3_u32 v13, v13, v%d, v%d" % (T+9, T+10))
    A("v_max_u32 v13, v13, v%d" % (T+11))
    A("v_and_b32 v13, 0x7ff, v13")
    A("v_sub_u32 v13, 2047, v13")
    A("s_nop 0")
    A("v_readfirstlane_b32 s36, v13")
    A.stamp(2)
    A("s_cmp_lt_u32 s2, %d" % NF)
    A("s_cbranch_scc1 %s" % L_ffn)
    A("s_waitcnt vmcnt(0)")
    ln_params(A, RS, RS+1, U, U+1, U+2)
    A("v_cmp_ne_u32 s[38:39], s36, v4")
    for i in range(3):
        hc = HC+4*i
        unpack8(A, U+4, hc)
        for e in range(8):
            A("v_sub_f32 v%d, v%d, v%d" % (U+12+e, U+4+e, U))
        for q in range(4):
            A("v_cvt_pk_bf16_f32 v%d, v%d, v%d" % (U+20+q, U+12+2*q, U+13+2*q))
        unpack8(A, U+12, U+20)
        for e in range(8):
            A("v_mul_f32 v%d, v%d, v%d" % (U+12+e, U+1, U+12+e))
        for q in range(4):
            A("v_cvt_pk_bf16_f32 v%d, v%d, v%d" % (U+20+q, U+12+2*q, U+13+2*q))
        unpack8(A, U+12, U+20)
        for e in range(8):
            A("v_add_f32 v%d, v%d, v%d" % (U+12+e, U+4+e, U+12+e))
        for q in range(4):
            A("v_cvt_pk_bf16_f32 v%d, v%d, v%d" % (U+24+4*i+q, U+12+2*q, U+13+2*q))
    A("v_cmp_gt_u32 vcc, 16, v5")
    A("s_nop 3")
    A("s_and_b64 vcc, vcc, s[38:39]")
    A("s_mov_b64 exec, s[38:39]")
    Lsk = A.newlabel(name+"_sk")
    A("s_cbranch_execz %s" % Lsk)
    A("buffer_store_dwordx4 %s, v6, s[12:15], 0 offen" % vr(U+24, 4))
    A("buffer_store_dwordx4 %s, v6, s[12:15], 0 offen offset:512" % vr(U+28, 4))
    A("s_mov_b64 exec, vcc")
    A("buffer_store_dwordx4 %s, v6, s[12:15], 0 offen offset:1024" % vr(U+32, 4))
    A.label(Lsk)
    A("s_mov_b64 exec, -1")
    A("s_branch %s" % L_end)
    A.label(L_ffn)
    XS = STt
    A("s_mul_i32 s37, s36, 1280")
    A("s_add_u32 s35, s37, 0x%x" % WS_H)
    A("v_lshlrev_b32 v%d, 1, v8" % T)
    A("v_add_u32 v%d, s35, v%d" % (T, T))
    for i in range(5):
        A("buffer_load_ushort v%d, v%d, s[8:11], 0 offen offset:%d" % (XS+i, T, 256*i))
    A("s_lshl_b32 s35, s36, 4")
    A("s_add_u32 s35, s35, 0x%x" % WS_ST)
    A("v_mov_b32 v%d, s35" % (T+1))
    A("buffer_load_dwordx4 v[24:27], v%d, s[8:11], 0 offen" % (T+1))
    AC = 112
    for e in range(16):
        A("v_mov_b32 v%d, 0" % (AC+e))
    A("s_waitcnt vmcnt(0)")
    A.stamp(5)
    MB = 28; RI = 29
    ln_params(A, 24, 25, MB, RI, T+2)
    A("v_fma_f32 v13, -v%d, v11, v26" % MB)
    A("v_mul_f32 v13, v13, v%d" % RI)
    for i in range(5):
        x = XS+i
        A("v_lshlrev_b32 v%d, 16, v%d" % (x, x))
        A("v_sub_f32 v%d, v%d, v%d" % (x, x, MB))
        bf16r(A, x, x)
        A("v_mul_f32 v%d, v%d, v%d" % (x, RI, x))
        bf16r(A, x, x)
        unpack8(A, T, G+4*i)
        for e in range(8):
            A("v_fmac_f32 v%d, v%d, v%d" % (AC+e, x, T+e))
        unpack8(A, T, Uu+4*i)
        for e in range(8):
            A("v_fmac_f32 v%d, v%d, v%d" % (AC+8+e, x, T+e))
    A("s_nop 1")
    for i in range(8):
        A("v_permlane32_swap_b32 v%d, v%d" % (AC+i, AC+8+i))
    A("s_nop 1")
    for i in range(8):
        A("v_add_f32 v%d, v%d, v%d" % (AC+i, AC+i, AC+8+i))
    A("s_nop 1")
    for i in range(4):
        A("v_permlane16_swap_b32 v%d, v%d" % (AC+i, AC+4+i))
    A("s_nop 1")
    for i in range(4):
        A("v_add_f32 v%d, v%d, v%d" % (AC+i, AC+i, AC+4+i))
    for ror in (8, 4):
        A("s_nop 1")
        for i in range(4):
            A("v_add_f32_dpp v%d, v%d, v%d row_ror:%d row_mask:0xf bank_mask:0xf" % (AC+4+i, AC+i, AC+i, ror))
        for i in range(4):
            A("v_mov_b32 v%d, v%d" % (AC+i, AC+4+i))
    A("v_lshrrev_b32 v%d, 5, v1" % T)
    A("v_lshlrev_b32 v%d, 7, v%d" % (T, T))
    A("v_bfe_u32 v%d, v1, 4, 1" % (T+1))
    A("v_lshl_add_u32 v%d, v%d, 4, v%d" % (T, T+1, T))
    A("v_lshl_add_u32 v%d, v9, 5, v%d" % (T, T))
    A("s_lshl_b32 s35, s3, 8")
    A("v_add_u32 v%d, s35, v%d" % (T, T))
    A("ds_write_b128 v%d, %s offset:64" % (T, vr(AC, 4)))
    A("s_waitcnt lgkmcnt(0)")
    A("s_barrier")
    A("v_lshlrev_b32 v%d, 2, v1" % T)
    for w in range(8):
        A("ds_read_b32 v%d, v%d offset:%d" % (AC+w, T, 64+256*w))
    A("s_waitcnt lgkmcnt(0)")
    for st in (1, 2, 4):
        for w in range(0, 8, 2*st):
            A("v_add_f32 v%d, v%d, v%d" % (AC+w, AC+w, AC+w+st))
    bf16r(A, AC, AC)
    A("v_mov_b32 v%d, v%d" % (AC+1, AC))
    A("s_nop 1")
    A("v_permlane32_swap_b32 v%d, v%d" % (AC, AC+1))
    A("s_nop 1")
    g = AC; u = AC+1
    A("v_mul_f32 v%d, 0x%x, v%d" % (g+2, f32bits(-LOG2E), g))
    A("v_exp_f32 v%d, v%d" % (g+2, g+2))
    A("s_nop 0")
    A("v_add_f32 v%d, 1.0, v%d" % (g+2, g+2))
    A("v_rcp_f32 v%d, v%d" % (g+2, g+2))
    A("s_nop 0")
    A("v_mul_f32 v%d, v%d, v%d" % (g, g, g+2))
    bf16r(A, g, g)
    A("v_mul_f32 v%d, v%d, v%d" % (g, g, u))
    bf16r(A, g, g)
    A("v_lshlrev_b32 v%d, 2, v5" % T)
    for i in range(6):
        A("v_add_u32 v%d, %d, v%d" % (T+1+i, 24*i, T))
    for i in range(6):
        A("ds_bpermute_b32 v%d, v%d, v%d" % (XS+i, T+1+i, g))
    A("v_cmp_gt_u32 vcc, 2, v5")
    for e in range(8):
        A("v_mov_b32 v%d, 0" % (AC+4+e))
    A("s_waitcnt lgkmcnt(0)")
    A("v_cndmask_b32 v%d, 0, v%d, vcc" % (XS+5, XS+5))
    AY = AC+4
    for i in range(6):
        unpack8(A, T, WD+4*i)
        for e in range(8):
            A("v_fmac_f32 v%d, v%d, v%d" % (AY+e, XS+i, T+e))
    A("v_mul_u32_u24 v%d, 2560, v5" % T)
    A("v_lshl_add_u32 v%d, v6, 5, v%d" % (T, T))
    A("ds_write_b128 v%d, %s offset:4096" % (T, vr(AY, 4)))
    A("ds_write_b128 v%d, %s offset:4112" % (T, vr(AY+4, 4)))
    A("s_waitcnt lgkmcnt(0)")
    A("s_barrier")
    A("v_lshlrev_b32 v%d, 2, v0" % T)
    for rg in range(6):
        A("ds_read_b32 v%d, v%d offset:%d" % (AC+rg, T, 4096+rg*2560))
    A("s_cmp_ge_u32 s3, 2")
    Lna = A.newlabel(name+"_na")
    A("s_cbranch_scc1 %s" % Lna)
    for rg in range(6):
        A("ds_read_b32 v%d, v%d offset:%d" % (AC+8+rg, T, 4096+rg*2560+2048))
    A("s_waitcnt lgkmcnt(0)")
    b = AC+8
    A("v_add_f32 v%d, v%d, v%d" % (b, b, b+1)); A("v_add_f32 v%d, v%d, v%d" % (b+2, b+2, b+3)); A("v_add_f32 v%d, v%d, v%d" % (b+4, b+4, b+5))
    A("v_add_f32 v%d, v%d, v%d" % (b, b, b+2)); A("v_add_f32 v%d, v%d, v%d" % (b, b, b+4))
    A("v_add_u32 v%d, 0x%x, v%d" % (T+1, WS_Y, T))
    A("buffer_atomic_add_f32 v%d, v%d, s[8:11], 0 offen offset:2048" % (b, T+1))
    A.label(Lna)
    A("s_waitcnt lgkmcnt(0)")
    b = AC
    A("v_add_f32 v%d, v%d, v%d" % (b, b, b+1)); A("v_add_f32 v%d, v%d, v%d" % (b+2, b+2, b+3)); A("v_add_f32 v%d, v%d, v%d" % (b+4, b+4, b+5))
    A("v_add_f32 v%d, v%d, v%d" % (b, b, b+2)); A("v_add_f32 v%d, v%d, v%d" % (b, b, b+4))
    A("v_add_u32 v%d, 0x%x, v%d" % (T+1, WS_Y, T))
    A("buffer_atomic_add_f32 v%d, v%d, s[8:11], 0 offen" % (b, T+1))
    A.stamp(3)
    A("s_waitcnt vmcnt(0)")
    A.stamp(6)
    A("s_barrier")
    A("s_cmp_lg_u32 s3, 0")
    A("s_cbranch_scc1 %s" % L_end)
    A("v_mov_b32 v%d, 1" % T)
    A("v_mov_b32 v%d, 0" % (T+1))
    A("s_mov_b64 exec, 1")
    A("buffer_atomic_add v%d, v%d, s[56:59], 0 offen sc0 sc1" % (T, T+1))
    A("s_mov_b64 exec, -1")
    A("v_lshlrev_b32 v%d, 2, v1" % (T+4))
    A("v_add_u32 v%d, s37, v%d" % (T+4, T+4))
    A("v_add_u32 v%d, 0x%x, v%d" % (T+5, WS_H, T+4))
    for i in range(5):
        A("buffer_load_dword v%d, v%d, s[8:11], 0 offen offset:%d" % (60+i, T+5, 256*i))
    bf16r(A, 13, 13)
    A("v_mul_f32 v13, 0x%x, v13" % f32bits(-LOG2E))
    A("v_exp_f32 v13, v13")
    A("s_nop 0")
    A("v_add_f32 v13, 1.0, v13")
    A("v_rcp_f32 v13, v13")
    A("s_nop 0")
    bf16r(A, 13, 13)
    A("s_waitcnt vmcnt(5)")
    A.stamp(7)
    A("v_readfirstlane_b32 s35, v%d" % T)
    A("s_nop 3")
    A("s_cmp_lg_u32 s35, %d" % (NF-1))
    A("s_cbranch_scc1 %s" % L_end)
    A("buffer_inv sc1")
    A("s_waitcnt vmcnt(0)")
    A("v_lshlrev_b32 v%d, 3, v1" % T)
    A("v_add_u32 v%d, 0x%x, v%d" % (T, WS_Y, T))
    for i in range(5):
        A("buffer_load_dwordx2 %s, v%d, s[8:11], 0 offen offset:%d sc0 sc1" % (vr(40+2*i, 2), T, 512*i))
    A("s_waitcnt vmcnt(0)")
    for i in range(5):
        A("v_lshlrev_b32 v%d, 16, v%d" % (T+6, 60+i))
        A("v_and_b32 v%d, 0xffff0000, v%d" % (T+7, 60+i))
        for e in range(2):
            y = 40+2*i+e; h = T+6+e; t = T+8
            bf16r(A, y, y)
            A("v_mul_f32 v%d, v13, v%d" % (y, y))
            bf16r(A, y, y)
            A("v_sub_f32 v%d, v%d, v%d" % (t, h, MB))
            bf16r(A, t, t)
            A("v_mul_f32 v%d, v%d, v%d" % (t, RI, t))
            bf16r(A, t, t)
            A("v_add_f32 v%d, v%d, v%d" % (t, t, y))
            bf16r(A, t, t)
            A("v_add_f32 v%d, v%d, v%d" % (y, h, t))
        A("v_cvt_pk_bf16_f32 v%d, v%d, v%d" % (70+i, 40+2*i, 41+2*i))
        A("buffer_store_dword v%d, v%d, s[12:15], 0 offen offset:%d" % (70+i, T+4, 256*i))
    A.label(L_end)
    A.stamp(4)
    A.dump_stamps(8, WS_DBG + dbgoff)
    A.label(name + "_exit")
    A("s_endpgm")
    return kernel_header(name) + A.text() + kernel_desc(name, 256 if stamps else 128, 102 if stamps else 64)
```

```python
import math

S, D, H, DH, F = 2048, 640, 32, 20, 1728
KA_X, KA_WQ, KA_WK, KA_WV, KA_WO, KA_BX, KA_WR, KA_WG, KA_WU, KA_WD, KA_OUT, KA_DBG, KA_WS = [8*i for i in range(13)]
WS_Q   = 0x000000
WS_KV  = 0x280000
WS_KN  = 0x2A8000
WS_ST  = 0x2A9000
WS_O   = 0x300000
WS_H   = 0x580000
WS_GU  = 0x800000
WS_SEL = 0x810000
WS_Y = 0x811000
WS_DBG = 0x900000
WS_END = 0x1400000
ACT_BYTES = S*D*2

def f32bits(x):
    import struct
    return struct.unpack("<I", struct.pack("<f", x))[0]

class Asm:
    def __init__(self):
        self.lines = []
        self.nlabel = 0
    def __call__(self, s):
        for l in s.strip("\n").split("\n"):
            self.lines.append("    " + l.strip())
    def label(self, name):
        self.lines.append(name + ":")
    def newlabel(self, p="L"):
        self.nlabel += 1
        return "%s_%d" % (p, self.nlabel)
    def comment(self, s):
        self.lines.append("    ; " + s)
    def stamp(self, i):
        if getattr(self, "stamps", False):
            self("s_memtime s[%d:%d]" % (64+2*i, 65+2*i))
            self("s_waitcnt lgkmcnt(0)")
            self.nstamp = max(getattr(self, "nstamp", 0), i+1)
    def rstamp(self, i):
        if getattr(self, "stamps", False):
            self("s_memrealtime s[%d:%d]" % (64+2*i, 65+2*i))
            self("s_waitcnt lgkmcnt(0)")
            self.nstamp = max(getattr(self, "nstamp", 0), i+1)
    def dump_stamps(self, srdws, region):
        if not getattr(self, "stamps", False): return
        self("s_lshl_b32 s62, s2, 4")
        self("s_add_u32 s62, s62, s3")
        self("s_lshl_b32 s62, s62, 6")
        self("s_add_u32 s62, s62, 0x%x" % region)
        self("v_mov_b32 v250, s62")
        for i in range(self.nstamp):
            self("v_mov_b32 v251, s%d" % (64+2*i))
            self("buffer_store_dword v251, v250, s[%d:%d], 0 offen offset:%d" % (srdws, srdws+3, 4*i))
    def text(self):
        return "\n".join(self.lines) + "\n"

def vr(a, n=1):
    return "v%d" % a if n == 1 else "v[%d:%d]" % (a, a+n-1)
def sr(a, n=1):
    return "s%d" % a if n == 1 else "s[%d:%d]" % (a, a+n-1)

def srd(A, d, base, nbytes):
    A("s_mov_b32 s%d, s%d" % (d, base))
    A("s_and_b32 s%d, s%d, 0xffff" % (d+1, base+1))
    A("s_mov_b32 s%d, 0x%x" % (d+2, nbytes))
    A("s_mov_b32 s%d, 0x00020000" % (d+3))

def kernel_header(name):
    return """.text
.globl %s
.p2align 8
.type %s,@function
%s:
""" % (name, name, name)

def kernel_desc(name, vgpr, sgpr):
    acc = ((vgpr + 3)//4)*4
    return """.section .rodata,"a"
.p2align 6
.amdhsa_kernel %s
  .amdhsa_next_free_vgpr %d
  .amdhsa_next_free_sgpr %d
  .amdhsa_accum_offset %d
  .amdhsa_group_segment_fixed_size 0
  .amdhsa_kernarg_size 104
  .amdhsa_user_sgpr_count 2
  .amdhsa_user_sgpr_kernarg_segment_ptr 1
  .amdhsa_system_sgpr_workgroup_id_x 1
.end_amdhsa_kernel
""" % (name, vgpr, sgpr, acc)

def reduce4groups(A, v, t0, t1):
    A("v_mov_b32 v%d, v%d" % (t0, v))
    A("v_mov_b32 v%d, v%d" % (t1, v))
    A("s_nop 1")
    A("v_permlane32_swap_b32 v%d, v%d" % (t0, t1))
    A("s_nop 1")
    A("v_add_f32 v%d, v%d, v%d" % (v, t0, t1))
    A("v_mov_b32 v%d, v%d" % (t0, v))
    A("v_mov_b32 v%d, v%d" % (t1, v))
    A("s_nop 1")
    A("v_permlane16_swap_b32 v%d, v%d" % (t0, t1))
    A("s_nop 1")
    A("v_add_f32 v%d, v%d, v%d" % (v, t0, t1))


def code_touch(A, target, endlabel, nbytes, vlane, vt, stag):
    L = A.newlabel(stag)
    A("s_getpc_b64 s[50:51]")
    A.label(L)
    A("s_add_u32 s50, s50, %s-%s" % (target, L))
    A("s_addc_u32 s51, s51, 0")
    A("v_lshlrev_b32 v%d, 6, v%d" % (vt+3, vlane))
    for i in range((nbytes + 4095)//4096):
        A("v_add_u32 v%d, %d, v%d" % (vt, 4096*i, vt+3))
        A("v_min_u32 v%d, %s-%s, v%d" % (vt, endlabel, target, vt))
        A("v_mov_b32 v%d, s51" % (vt+1))
        A("v_add_co_u32 v%d, vcc, s50, v%d" % (vt, vt))
        A("v_addc_co_u32 v%d, vcc, 0, v%d, vcc" % (vt+1, vt+1))
        A("global_load_dword v%d, v[%d:%d], off" % (vt+2, vt, vt+1))
```

```python
from common import *
from k_tail import wave_sum

L_W = 0
L_XR = 61440
L_KVW = 110592
LDS_GEMM2 = 139264
CODE_TOUCH = True
QSCALE = (20.0 ** -0.5) * math.log2(math.e)

def gen_gemm2(mode, name, stamps=False, dbgoff=0):
    A = Asm(); A.stamps = stamps
    qkv = (mode == 'qkv')
    L_end = name + "_end"
    AF = [16, 36]
    KF = [56, 64]
    XF = [72, 76]
    ACC = 80
    ACCKV = 100
    CS = 108
    CSKV = 128
    SX = 136; SQ = 140; ONES = 144
    XR = 148; WR = 158
    T = 168
    A("s_cmp_ge_u32 s2, 256")
    A("s_cbranch_scc1 %s_exit" % name)
    if qkv:
        A("s_load_dwordx2 s[4:5], s[0:1], %d" % KA_X)
        A("s_load_dwordx2 s[6:7], s[0:1], %d" % KA_WQ)
        A("s_load_dwordx2 s[8:9], s[0:1], %d" % KA_WK)
        A("s_load_dwordx2 s[10:11], s[0:1], %d" % KA_WV)
        A("s_load_dwordx2 s[14:15], s[0:1], %d" % KA_WR)
    else:
        A("s_load_dwordx2 s[6:7], s[0:1], %d" % KA_WO)
        A("s_load_dwordx2 s[8:9], s[0:1], %d" % KA_X)
        A("s_load_dwordx2 s[10:11], s[0:1], %d" % KA_WR)
    A("s_load_dwordx2 s[12:13], s[0:1], %d" % KA_WS)
    A("s_and_b32 s36, s2, 7")
    A("s_lshr_b32 s37, s2, 6")
    A("s_lshl_b32 s37, s37, 3")
    A("s_add_u32 s36, s36, s37")
    A("s_lshr_b32 s37, s2, 3")
    A("s_and_b32 s37, s37, 7")
    A("v_and_b32 v1, 63, v0")
    A("v_and_b32 v2, 15, v0")
    A("v_lshrrev_b32 v3, 4, v1")
    A("v_lshrrev_b32 v5, 6, v0")
    A("s_nop 0")
    A("v_readfirstlane_b32 s3, v5")
    A("s_lshl_b32 s38, s36, 6")
    A("s_lshl_b32 s39, s3, 4")
    A("s_add_u32 s38, s38, s39")
    A("v_add_u32 v6, s38, v2")
    A("v_lshrrev_b32 v7, 2, v1")
    A("v_bfe_u32 v8, v1, 4, 2")
    A("v_and_b32 v9, 3, v1")
    A("v_xor_b32 v8, v8, v9")
    A("v_add_u32 v7, s38, v7")
    A("v_mul_u32_u24 v7, 1280, v7")
    A("v_lshl_add_u32 v7, v8, 4, v7")
    if not qkv:
        A("v_add_u32 v7, 0x%x, v7" % WS_O)
    A("s_lshl_b32 s39, s3, 6")
    A("v_add_u32 v8, s39, v1")
    A("v_add_u32 v9, 256, v1")
    A("s_mul_i32 s39, s37, 160")
    for v in (8, 9):
        A("v_mul_u32_u24 v10, 0x199a, v%d" % v)
        A("v_lshrrev_b32 v10, 16, v10")
        A("v_mul_u32_u24 v11, 10, v10")
        A("v_sub_u32 v11, v%d, v11" % v)
        A("v_mul_u32_u24 v10, 1280, v10")
        A("v_lshl_add_u32 v10, v11, 4, v10")
        A("v_add_u32 v%d, s39, v10" % v)
    A("v_lshlrev_b32 v10, 4, v1")
    A("s_mul_i32 s39, s38, 1280")
    A("v_lshlrev_b32 v11, 7, v1")
    A("v_add_u32 v11, s39, v11")
    if not qkv:
        A("v_add_u32 v11, 0x%x, v11" % WS_O)
    A("s_waitcnt lgkmcnt(0)")
    A.stamp(0)
    A.rstamp(6)
    srd(A, 28, 12, WS_END)
    if qkv:
        srd(A, 16, 4, ACT_BYTES)
    else:
        srd(A, 16, 12, WS_END)
    srd(A, 20, 6, D*D*2)
    if qkv:
        A("s_cmp_eq_u32 s37, 0")
        A("s_cselect_b32 s24, s8, s10")
        A("s_cselect_b32 s25, s9, s11")
        A("s_and_b32 s25, s25, 0xffff")
        A("s_mov_b32 s26, %d" % (D*DH*2))
        A("s_mov_b32 s27, 0x00020000")
        A("s_cmp_lt_u32 s37, 2")
        A("s_cselect_b32 s42, 0, 0x100000")
    else:
        srd(A, 24, 8, ACT_BYTES)
        srd(A, 32, 10, D*2)
    A("s_mul_i32 s43, s3, 12288")
    A("s_add_u32 s43, s43, %d" % L_XR)
    A("s_lshl_b32 s45, s3, 10")
    A("s_mul_i32 s46, s3, 5120")
    A("s_mul_i32 s47, s3, 40960")
    def dma_one(p, i):
        slot = p % 3
        if i < 4:
            s = 4*p + i
            A("s_add_u32 s40, s43, %d" % (slot*4096 + i*1024))
            A("s_mov_b32 m0, s40")
            A("s_movk_i32 s41, %d" % (64*s))
            A("buffer_load_dwordx4 v7, s[16:19], s41 offen lds")
        elif i < 8:
            a = 4*p + i - 4
            A("s_add_u32 s40, s45, %d" % (slot*20480 + (i-4)*5120))
            A("s_mov_b32 m0, s40")
            A("s_mov_b32 s41, %d" % (a*40960))
            A("buffer_load_dwordx4 v8, s[20:23], s41 offen lds")
        else:
            A("s_add_u32 s40, s46, %d" % (slot*20480 + 4096))
            A("s_mov_b32 m0, s40")
            A("s_add_u32 s41, s47, %d" % (4*p*40960))
            A("buffer_load_dwordx4 v9, s[20:23], s41 offen lds")
    def dma_phase(p):
        for i in range(9):
            dma_one(p, i)
    nfirst = 0
    if not qkv:
        A("v_mul_u32_u24 v12, 1280, v6")
        A("s_mul_i32 s39, s37, 160")
        A("v_lshl_add_u32 v13, v3, 3, s39")
        A("v_add_u32 v12, v12, v13")
    dma_phase(0)
    if qkv:
        for i in range(7):
            A("s_add_u32 s41, s45, %d" % (i*4096))
            A("s_add_u32 s40, s41, %d" % L_KVW)
            A("s_mov_b32 m0, s40")
            A("s_add_u32 s41, s41, s42")
            A("buffer_load_dwordx4 v10, s[24:27], s41 offen lds")
    dma_phase(1)
    A("v_lshrrev_b32 v14, 2, v2")
    A("v_and_b32 v15, 3, v2")
    A("v_lshl_add_u32 v14, v3, 2, v14")
    A("v_mul_u32_u24 v%d, 40, v14" % (T+8))
    A("v_lshl_add_u32 v%d, v15, 3, v%d" % (T+8, T+8))
    A("v_add_u32 v%d, %d, v%d" % (T+8, L_KVW, T+8))
    A("v_mul_u32_u24 v14, 160, v14")
    A("v_lshl_add_u32 v14, v15, 3, v14")
    A("v_add_u32 v15, 61440, v14")
    vKB = 4
    A("v_mov_b32 v4, v%d" % (T+8))
    vXA = [10, 11]
    A("v_lshrrev_b32 v%d, 1, v3" % (T+8))
    A("v_lshrrev_b32 v%d, 2, v2" % (T+9))
    A("v_xor_b32 v%d, v%d, v%d" % (T+8, T+8, T+9))
    A("v_xor_b32 v%d, 2, v%d" % (T+9, T+8))
    A("v_and_b32 v%d, 1, v3" % (T+10))
    A("v_lshlrev_b32 v%d, 3, v%d" % (T+10, T+10))
    A("v_lshl_add_u32 v%d, v2, 6, v%d" % (T+10, T+10))
    A("v_add_u32 v%d, s43, v%d" % (T+10, T+10))
    A("v_lshl_add_u32 v10, v%d, 4, v%d" % (T+8, T+10))
    A("v_lshl_add_u32 v11, v%d, 4, v%d" % (T+9, T+10))
    for i in range(4):
        A("v_mov_b32 v%d, 0x3f803f80" % (ONES+i))
    A.stamp(1)
    A("s_waitcnt vmcnt(9)")
    A("s_barrier")
    A.stamp(2)

    def reads(s):
        b = s & 1
        xo = ((s >> 2) % 3)*4096 + (s & 3)*1024
        A("ds_read_b64 %s, v%d offset:%d" % (vr(XF[b], 2), vXA[0], xo))
        A("ds_read_b64 %s, v%d offset:%d" % (vr(XF[b]+2, 2), vXA[1], xo))
        base, off = 14, ((s >> 2) % 3)*20480 + (s & 3)*5120
        for j in range(5):
            A("ds_read_b64_tr_b16 %s, v%d offset:%d" % (vr(AF[b]+4*j, 2), base, off+32*j))
            A("ds_read_b64_tr_b16 %s, v%d offset:%d" % (vr(AF[b]+4*j+2, 2), base, off+2560+32*j))
        if qkv:
            L = A.newlabel(name+"_nkr")
            A("s_cbranch_vccz %s" % L)
            for j in range(2):
                A("ds_read_b64_tr_b16 %s, v%d offset:%d" % (vr(KF[b]+4*j, 2), vKB, s*1280+32*j))
                A("ds_read_b64_tr_b16 %s, v%d offset:%d" % (vr(KF[b]+4*j+2, 2), vKB, s*1280+640+32*j))
            A.label(L)
    def mf(d, a, bb, first):
        A("v_mfma_f32_16x16x32_bf16 %s, %s, %s, %s" % (vr(d, 4), vr(a, 4), vr(bb, 4), "0" if first else vr(d, 4)))
    if qkv:
        A("s_cmp_lt_u32 s37, 2")
        A("s_cselect_b64 vcc, -1, 0")
    reads_done_kv = False
    reads(0)
    for s in range(20):
        b = s & 1
        A("s_waitcnt lgkmcnt(0)")
        p, ks = divmod(s, 4)
        if ks == 3 and p < 4:
            A("s_waitcnt vmcnt(%d)" % (7 if p <= 2 else 0))
            A("s_barrier")
        if p <= 2:
            for i in ([0, 1, 2], [3, 4], [5, 6], [7, 8])[ks]:
                dma_one(p+2, i)
        if s == 16 and not qkv:
            for j in range(5):
                A("buffer_load_dwordx2 %s, v12, s[24:27], 0 offen offset:%d" % (vr(XR+2*j, 2), 32*j))
            for j in range(5):
                A("buffer_load_dwordx2 %s, v13, s[32:35], 0 offen offset:%d" % (vr(WR+2*j, 2), 32*j))
        if s < 19:
            reads(s+1)
        for j in range(5):
            mf(ACC+4*j, AF[b]+4*j, XF[b], s == 0)
        if qkv:
            mf(SX, ONES, XF[b], s == 0)
            mf(SQ, XF[b], XF[b], s == 0)
            Lk = A.newlabel(name+"_nk"); Lc = A.newlabel(name+"_nc")
            A("s_cbranch_vccz %s" % Lk)
            for j in range(2):
                mf(ACCKV+4*j, KF[b]+4*j, XF[b], s == 0)
            A.label(Lk)
            A("s_cmp_lg_u32 s3, %d" % (s & 3))
            A("s_cbranch_scc1 %s" % Lc)
            for j in range(5):
                mf(CS+4*j, AF[b]+4*j, ONES, s < 4)
            for j in range(2):
                mf(CSKV+4*j, KF[b]+4*j, ONES, s < 4)
            A.label(Lc)
    A("s_nop 7")
    A("s_nop 3")
    A("s_waitcnt vmcnt(0)")
    if qkv and CODE_TOUCH:
        code_touch(A, "k2_kernel", "k4_kernel_exit", 20480, 1, 26, name+"_ct")
    A.stamp(3)
    if qkv:
        A("v_lshlrev_b32 v5, 4, v3")
        A("v_add_u32 v5, s43, v5")
        for j in range(7):
            A("ds_write_b128 v5, %s offset:%d" % (vr(CS+4*j, 4), 64*j))
        A("v_and_b32 v%d, 3, v2" % T)
        A("v_cmp_eq_u32 vcc, 1, v%d" % T)
        A("s_nop 1")
        A("v_cndmask_b32 v%d, v%d, v%d, vcc" % (SQ, SQ, SQ+1))
        A("v_cmp_eq_u32 vcc, 2, v%d" % T)
        A("s_nop 1")
        A("v_cndmask_b32 v%d, v%d, v%d, vcc" % (SQ, SQ, SQ+2))
        A("v_cmp_eq_u32 vcc, 3, v%d" % T)
        A("s_nop 1")
        A("v_cndmask_b32 v%d, v%d, v%d, vcc" % (SQ, SQ, SQ+3))
        A("v_lshrrev_b32 v%d, 2, v2" % T)
        A("v_cmp_eq_u32 vcc, v3, v%d" % T)
        A("s_nop 1")
        A("v_cndmask_b32 v%d, 0, v%d, vcc" % (SQ, SQ))
        reduce4groups(A, SQ, T, T+1)
        A("s_waitcnt lgkmcnt(0)")
        A("s_barrier")
        A("v_lshlrev_b32 v5, 4, v3")
        A("v_add_u32 v5, %d, v5" % L_XR)
        CR = T+8
        cr = lambda j: (CR+16*j) if j < 5 else (40+16*(j-5))
        for j in range(7):
            for w in range(4):
                A("ds_read_b128 %s, v5 offset:%d" % (vr(cr(j)+4*w, 4), w*12288+64*j))
        MEAN = SX; RS = SX+1; RSQ = SX+2
        A("v_mul_f32 v%d, 0x%x, v%d" % (MEAN, f32bits(1.0/640), SX))
        A("v_mul_f32 v%d, 0x%x, v%d" % (SQ, f32bits(1.0/640), SQ))
        A("v_fma_f32 v%d, -v%d, v%d, v%d" % (SQ, MEAN, MEAN, SQ))
        A("v_max_f32 v%d, 0, v%d" % (SQ, SQ))
        A("v_add_f32 v%d, 0x%x, v%d" % (SQ, f32bits(1e-5), SQ))
        A("v_rsq_f32 v%d, v%d" % (RS, SQ))
        A("s_nop 0")
        A("v_mul_f32 v%d, 0x%x, v%d" % (RSQ, f32bits(QSCALE), RS))
        A("v_mul_u32_u24 v7, 1280, v6")
        A("s_mul_i32 s39, s37, 160")
        A("v_lshl_add_u32 v8, v3, 3, s39")
        A("v_add_u32 v7, v7, v8")
        A("s_waitcnt lgkmcnt(0)")
        def normalize(j, acc, scale_reg):
            c = cr(j)
            for r in range(4):
                A("v_add_f32 v%d, v%d, v%d" % (c+r, c+r, c+4+r))
                A("v_add_f32 v%d, v%d, v%d" % (c+8+r, c+8+r, c+12+r))
            for r in range(4):
                A("v_add_f32 v%d, v%d, v%d" % (c+r, c+r, c+8+r))
            for r in range(4):
                A("v_fma_f32 v%d, -v%d, v%d, v%d" % (acc+r, MEAN, c+r, acc+r))
            for r in range(4):
                A("v_mul_f32 v%d, v%d, v%d" % (acc+r, scale_reg, acc+r))
        for j in range(5):
            normalize(j, ACC+4*j, RSQ)
            A("v_cvt_pk_bf16_f32 v%d, v%d, v%d" % (AF[0]+2*j, ACC+4*j, ACC+4*j+1))
            A("v_cvt_pk_bf16_f32 v%d, v%d, v%d" % (AF[0]+2*j+1, ACC+4*j+2, ACC+4*j+3))
            A("buffer_store_dwordx2 %s, v7, s[28:31], 0 offen offset:%d" % (vr(AF[0]+2*j, 2), 32*j))
        Lv = A.newlabel(name+"_v"); Lz = A.newlabel(name+"_z")
        A("s_cmp_ge_u32 s37, 2")
        A("s_cbranch_scc1 %s" % Lz)
        normalize(5, ACCKV, RS); normalize(6, ACCKV+4, RS)
        P4 = AF[1]
        A("v_cvt_pk_bf16_f32 v%d, v%d, v%d" % (P4, ACCKV, ACCKV+1))
        A("v_cvt_pk_bf16_f32 v%d, v%d, v%d" % (P4+1, ACCKV+2, ACCKV+3))
        A("v_cvt_pk_bf16_f32 v%d, v%d, v%d" % (P4+2, ACCKV+4, ACCKV+5))
        A("v_cvt_pk_bf16_f32 v%d, v%d, v%d" % (P4+3, ACCKV+6, ACCKV+7))
        A("v_lshrrev_b32 v8, 5, v6")
        A("v_mul_u32_u24 v8, 2560, v8")
        A("v_add_u32 v8, 0x%x, v8" % WS_KV)
        A("v_and_b32 v9, 31, v6")
        A("s_cmp_eq_u32 s37, 1")
        A("s_cbranch_scc1 %s" % Lv)
        A("v_lshrrev_b32 v10, 1, v3")
        A("v_lshl_add_u32 v10, v10, 5, v9")
        A("v_lshlrev_b32 v10, 4, v10")
        A("v_and_b32 v11, 1, v3")
        A("v_lshl_add_u32 v10, v11, 3, v10")
        A("v_add_u32 v10, v10, v8")
        A("buffer_store_dwordx2 %s, v10, s[28:31], 0 offen" % vr(P4, 2))
        A("v_lshl_add_u32 v10, v9, 3, v8")
        A("v_cmp_eq_u32 vcc, 0, v3")
        A("s_and_saveexec_b64 s[40:41], vcc")
        A("buffer_store_dwordx2 %s, v10, s[28:31], 0 offen offset:1024" % vr(P4+2, 2))
        A("s_mov_b64 exec, s[40:41]")
        A("v_mov_b32 v%d, 0" % (T))
        A("v_mov_b32 v%d, 0" % (T+1))
        A("v_dot2c_f32_bf16 v%d, v%d, v%d" % (T, P4, P4))
        A("v_dot2c_f32_bf16 v%d, v%d, v%d" % (T+1, P4+2, P4+2))
        A("v_dot2c_f32_bf16 v%d, v%d, v%d" % (T, P4+1, P4+1))
        A("v_dot2c_f32_bf16 v%d, v%d, v%d" % (T+1, P4+3, P4+3))
        A("s_nop 3")
        A("v_cndmask_b32 v%d, 0, v%d, vcc" % (T+1, T+1))
        A("v_add_f32 v%d, v%d, v%d" % (T, T, T+1))
        reduce4groups(A, T, T+2, T+3)
        for ror in (8, 4, 2, 1):
            A("s_nop 1")
            A("v_max_f32_dpp v%d, v%d, v%d row_ror:%d row_mask:0xf bank_mask:0xf" % (T, T, T, ror))
        A("s_lshl_b32 s39, s36, 2")
        A("s_add_u32 s39, s39, s3")
        A("s_lshl_b32 s39, s39, 2")
        A("s_add_u32 s39, s39, 0x%x" % WS_KN)
        A("v_mov_b32 v10, s39")
        A("buffer_store_dword v%d, v10, s[28:31], 0 offen" % T)
        A("s_branch %s" % L_end)
        A.label(Lv)
        A("v_lshrrev_b32 v10, 4, v9")
        A("v_mul_u32_u24 v10, 640, v10")
        A("v_bfe_u32 v11, v9, 2, 1")
        A("v_mul_u32_u24 v11, 320, v11")
        A("v_add3_u32 v10, v10, v11, v8")
        A("v_and_b32 v11, 3, v9")
        A("v_lshl_add_u32 v10, v11, 1, v10")
        A("v_bfe_u32 v11, v9, 3, 1")
        A("v_lshl_add_u32 v10, v11, 3, v10")
        A("v_lshl_add_u32 v10, v3, 6, v10")
        A("buffer_store_short v%d, v10, s[28:31], 0 offen offset:1280" % (P4))
        A("buffer_store_short_d16_hi v%d, v10, s[28:31], 0 offen offset:1296" % (P4))
        A("buffer_store_short v%d, v10, s[28:31], 0 offen offset:1312" % (P4+1))
        A("buffer_store_short_d16_hi v%d, v10, s[28:31], 0 offen offset:1328" % (P4+1))
        A("v_cmp_eq_u32 vcc, 0, v3")
        A("s_and_saveexec_b64 s[40:41], vcc")
        A("buffer_store_short v%d, v10, s[28:31], 0 offen offset:1536" % (P4+2))
        A("buffer_store_short_d16_hi v%d, v10, s[28:31], 0 offen offset:1552" % (P4+2))
        A("buffer_store_short v%d, v10, s[28:31], 0 offen offset:1568" % (P4+3))
        A("buffer_store_short_d16_hi v%d, v10, s[28:31], 0 offen offset:1584" % (P4+3))
        A("s_mov_b64 exec, s[40:41]")
        A("s_branch %s" % L_end)
        A.label(Lz)
        Lz2 = A.newlabel(name+"_z2")
        A("s_cmp_lg_u32 s2, 24")
        A("s_cbranch_scc1 %s" % Lz2)
        A("v_lshlrev_b32 v10, 4, v0")
        A("v_add_u32 v10, 0x%x, v10" % WS_Y)
        for r in range(4):
            A("v_mov_b32 v%d, 0" % (T+r))
        A("buffer_store_dwordx4 %s, v10, s[28:31], 0 offen" % vr(T, 4))
        srd(A, 32, 14, D*2)
        A("v_mul_u32_u24 v10, 20, v1")
        A("buffer_load_dwordx4 %s, v10, s[32:35], 0 offen" % vr(T+4, 4))
        A("buffer_load_dword v%d, v10, s[32:35], 0 offen offset:16" % (T+8))
        A("v_mov_b32 v%d, 0" % (T+9))
        A("s_waitcnt vmcnt(0)")
        for i in range(5):
            A("v_dot2c_f32_bf16 v%d, v%d, v%d" % (T+9, T+4+i, ONES))
        A("s_nop 3")
        wave_sum(A, T+9, T+10, T+11)
        A("v_mov_b32 v10, 0x%x" % WS_SEL)
        A("buffer_store_dword v%d, v10, s[28:31], 0 offen" % (T+9))
        A("s_branch %s" % L_end)
        A.label(Lz2)
        A("s_cmp_lg_u32 s37, 2")
        A("s_cbranch_scc1 %s" % L_end)
        A("s_lshl_b32 s39, s36, 10")
        A("s_add_u32 s39, s39, 0x%x" % WS_ST)
        A("v_lshlrev_b32 v10, 4, v1")
        A("v_add_u32 v10, s39, v10")
        for r in range(4):
            A("v_mov_b32 v%d, 0" % (T+r))
        A("buffer_store_dwordx4 %s, v10, s[28:31], 0 offen" % vr(T, 4))
    else:
        ST = SX
        for i in range(4):
            A("v_mov_b32 v%d, 0" % (ST+i))
        A("v_add_u32 v7, 0x%x, v12" % WS_H)
        for j in range(5):
            a = ACC+4*j
            U = T + 16*j
            A("v_cvt_pk_bf16_f32 v%d, v%d, v%d" % (U, a, a+1))
            A("v_cvt_pk_bf16_f32 v%d, v%d, v%d" % (U+1, a+2, a+3))
            for h in range(2):
                A("v_lshlrev_b32 v%d, 16, v%d" % (U+2+2*h, U+h))
                A("v_and_b32 v%d, 0xffff0000, v%d" % (U+3+2*h, U+h))
                A("v_lshlrev_b32 v%d, 16, v%d" % (U+6+2*h, XR+2*j+h))
                A("v_and_b32 v%d, 0xffff0000, v%d" % (U+7+2*h, XR+2*j+h))
            for r in range(4):
                A("v_add_f32 v%d, v%d, v%d" % (U+2+r, U+2+r, U+6+r))
            A("v_cvt_pk_bf16_f32 v%d, v%d, v%d" % (U+10, U+2, U+3))
            A("v_cvt_pk_bf16_f32 v%d, v%d, v%d" % (U+11, U+4, U+5))
            A("buffer_store_dwordx2 %s, v7, s[28:31], 0 offen offset:%d" % (vr(U+10, 2), 32*j))
            for h in range(2):
                A("v_dot2c_f32_bf16 v%d, v%d, v%d" % (ST, U+10+h, ONES))
                A("v_dot2c_f32_bf16 v%d, v%d, v%d" % (ST+1, U+10+h, U+10+h))
                A("v_dot2c_f32_bf16 v%d, v%d, v%d" % (ST+2, U+10+h, WR+2*j+h))
        A("s_nop 3")
        reduce4groups(A, ST, AF[0], AF[0]+1)
        reduce4groups(A, ST+1, AF[0], AF[0]+1)
        reduce4groups(A, ST+2, AF[0], AF[0]+1)
        for gi in (1, 2, 3):
            A("v_cmp_eq_u32 vcc, %d, v3" % gi)
            A("s_nop 1")
            A("v_cndmask_b32 v%d, v%d, v%d, vcc" % (ST, ST, ST+gi))
        A("v_lshlrev_b32 v8, 4, v6")
        A("v_lshl_add_u32 v8, v3, 2, v8")
        A("v_add_u32 v8, 0x%x, v8" % WS_ST)
        A("buffer_atomic_add_f32 v%d, v8, s[28:31], 0 offen" % ST)
    A.label(L_end)
    A.stamp(4)
    A.stamp(5)
    A.rstamp(7)
    A.dump_stamps(28, WS_DBG + dbgoff)
    A.label(name + "_exit")
    A("s_endpgm")
    return kernel_header(name) + A.text() + kernel_desc(name, 256, 96 if stamps else 56)
```

```python
from common import *

LDS_ATTN = 163840
THR2 = 2200.0

def wave_max(A, v, t0, t1):
    for ror in (8, 4, 2, 1):
        A("s_nop 1")
        A("v_max_f32_dpp v%d, v%d, v%d row_ror:%d row_mask:0xf bank_mask:0xf" % (v, v, v, ror))
    for sw in ("v_permlane16_swap_b32", "v_permlane32_swap_b32"):
        A("v_mov_b32 v%d, v%d" % (t0, v))
        A("v_mov_b32 v%d, v%d" % (t1, v))
        A("s_nop 1")
        A("%s v%d, v%d" % (sw, t0, t1))
        A("s_nop 1")
        A("v_max_f32 v%d, v%d, v%d" % (v, t0, t1))

def gen_attn(name, force_slow=False, stamps=False, dbgoff=0):
    A = Asm()
    A.stamps = stamps
    L_end = name + "_end"
    Q1 = [16, 24]; Q2 = [20, 28]
    KL = [32, 40]; KH = [36, 44]; VF = [48, 56]
    SS = [[64, 80], [96, 112]]
    P = [128, 136]; O = [144, 160]; M = [176, 177]; T = 178
    A("s_cmp_ge_u32 s2, 256")
    A("s_cbranch_scc1 %s_exit" % name)
    A("s_load_dwordx2 s[4:5], s[0:1], %d" % KA_WS)
    A("s_load_dwordx2 s[24:25], s[0:1], %d" % KA_WO)
    A("s_load_dwordx4 s[28:31], s[0:1], %d" % KA_WG)
    A("s_load_dwordx2 s[26:27], s[0:1], %d" % KA_WD)
    A("v_and_b32 v1, 63, v0")
    A("v_and_b32 v2, 31, v0")
    A("v_lshrrev_b32 v3, 5, v1")
    A("v_lshrrev_b32 v7, 6, v0")
    A("s_nop 0")
    A("v_readfirstlane_b32 s3, v7")
    A("s_mov_b32 s14, 0x000fffff")
    A("s_mov_b32 s15, 0x000fffff")
    A("s_mov_b32 s18, 0x07060302")
    A("s_waitcnt lgkmcnt(0)")
    A.stamp(0)
    A.rstamp(6)
    srd(A, 8, 4, WS_END)
    A("s_and_b32 s12, s3, 3")
    A("s_lshr_b32 s13, s3, 2")
    A("s_lshl_b32 s19, s2, 3")
    A("s_lshl_b32 s17, s12, 1")
    A("s_add_u32 s19, s19, s17")
    A("s_mul_i32 s19, s19, 1280")
    A("v_mul_u32_u24 v8, 40, v2")
    A("v_lshl_add_u32 v8, v3, 4, v8")
    A("v_add_u32 v8, s19, v8")
    for X in range(2):
        for r in range(4):
            A("v_mov_b32 v%d, 0" % (Q2[X]+r))
    for X in range(2):
        A("buffer_load_dwordx4 %s, v8, s[8:11], 0 offen offset:%d" % (vr(Q1[X], 4), 1280*X))
    A("s_mov_b32 s20, -1")
    A("s_mov_b32 s21, 0")
    A("s_mov_b64 exec, s[20:21]")
    for X in range(2):
        A("buffer_load_dwordx2 %s, v8, s[8:11], 0 offen offset:%d" % (vr(Q2[X], 2), 1280*X+32))
    A("s_mov_b64 exec, -1")
    A("v_lshlrev_b32 v9, 3, v1")
    A("v_add_u32 v9, 0x%x, v9" % WS_KN)
    A("buffer_load_dwordx2 v[10:11], v9, s[8:11], 0 offen")
    A("v_lshlrev_b32 v7, 4, v1")
    A("v_add_u32 v7, 0x%x, v7" % WS_KV)
    A("s_lshl_b32 s22, s3, 10")
    def dma_pair():
        A("s_mov_b32 m0, s22")
        A("s_add_u32 s23, s22, 81920")
        A("buffer_load_dwordx4 v7, s[8:11], s22 offen lds")
        A("s_mov_b32 m0, s23")
        A("s_add_u32 s22, s22, 8192")
        A("buffer_load_dwordx4 v7, s[8:11], s23 offen lds")
    for i in range(4):
        dma_pair()
    srd(A, 32, 24, D*D*2); srd(A, 36, 28, D*F*2); srd(A, 40, 30, D*F*2); srd(A, 44, 26, D*F*2)
    for X in range(2):
        for r in range(16):
            A("v_mov_b32 v%d, 0" % (O[X]+r))
        A("v_mov_b32 v%d, 0" % M[X])
    for b in range(2):
        A("v_mov_b32 v%d, 0" % (KH[b]+2))
        A("v_mov_b32 v%d, 0" % (KH[b]+3))
    A("v_cmp_eq_u32 vcc, 20, v2")
    A("v_mov_b32 v12, 0x3f803f80")
    A("s_nop 1")
    A("v_cndmask_b32 v12, 0, v12, vcc")
    for b in range(2):
        for r in range(8):
            A("v_mov_b32 v%d, v12" % (VF[b]+r))
    A("s_mul_i32 s17, s13, 81920")
    A("v_lshlrev_b32 v4, 4, v1")
    A("v_add_u32 v4, s17, v4")
    A("v_lshlrev_b32 v5, 3, v2")
    A("v_add_u32 v5, s17, v5")
    A("v_min_u32 v6, 19, v2")
    A("v_mul_u32_u24 v12, 20, v3")
    A("v_add_u32 v6, v6, v12")
    A("v_lshlrev_b32 v6, 4, v6")
    A("v_add_u32 v6, s17, v6")
    A.stamp(1)
    A("s_waitcnt vmcnt(8)")
    A("v_max_f32 v10, v10, v11")
    wave_max(A, 10, 12, 13)
    for X in range(2):
        A("v_mov_b32 v%d, 0" % (12+X))
    for X in range(2):
        for r in range(4):
            A("v_dot2c_f32_bf16 v%d, v%d, v%d" % (12+X, Q1[X]+r, Q1[X]+r))
        for r in range(2):
            A("v_dot2c_f32_bf16 v%d, v%d, v%d" % (12+X, Q2[X]+r, Q2[X]+r))
    A("s_nop 3")
    A("v_max_f32 v12, v12, v13")
    A("v_mov_b32 v13, v12")
    A("v_mov_b32 v14, v12")
    A("s_nop 1")
    A("v_permlane32_swap_b32 v13, v14")
    A("s_nop 1")
    A("v_add_f32 v12, v13, v14")
    A("v_mul_f32 v12, v12, v10")
    A("v_mov_b32 v13, 0x%x" % f32bits(THR2))
    A("v_cmp_nle_f32 vcc, v12, v13")
    A.stamp(2)
    A("s_waitcnt vmcnt(0)")
    A("s_barrier")
    L_slow = name + "_slow"; L_merge = name + "_merge"
    if force_slow:
        A("s_branch %s" % L_slow)
    else:
        A("s_cmp_lg_u64 vcc, 0")
        A("s_cbranch_scc1 %s" % L_slow)

    def rdK(b, off):
        A("ds_read_b128 %s, v4 offset:%d" % (vr(KL[b], 4), off))
        A("ds_read_b64 %s, v5 offset:%d" % (vr(KH[b], 2), off+1024))
    def rdV(b, off):
        A("s_mov_b64 exec, s[14:15]")
        A("ds_read_b128 %s, v6 offset:%d" % (vr(VF[b], 4), off+1280))
        A("ds_read_b128 %s, v6 offset:%d" % (vr(VF[b]+4, 4), off+1920))
        A("s_mov_b64 exec, -1")
    def qk(dst, kb, X, part):
        if part == 0:
            A("v_mfma_f32_32x32x16_bf16 %s, %s, %s, 0" % (vr(dst, 16), vr(KL[kb], 4), vr(Q1[X], 4)))
        else:
            A("v_mfma_f32_32x32x16_bf16 %s, %s, %s, %s" % (vr(dst, 16), vr(KH[kb], 4), vr(Q2[X], 4), vr(dst, 16)))
    def pv(X, vb, m):
        A("v_mfma_f32_32x32x16_bf16 %s, %s, %s, %s" % (vr(O[X], 16), vr(VF[vb]+4*m, 4), vr(P[X]+4*m, 4), vr(O[X], 16)))
    def exps(s, lo, hi):
        for r in range(lo, hi):
            A("v_exp_f32 v%d, v%d" % (s+r, s+r))
    def perm(X, s, i):
        A("v_perm_b32 v%d, v%d, v%d, s18" % (P[X]+i, s+2*i+1, s+2*i))

    A.stamp(3)
    rdK(0, 0)
    A("s_waitcnt lgkmcnt(0)")
    for X in range(2):
        qk(SS[0][X], 0, X, 0); qk(SS[0][X], 0, X, 1)
    rdK(1, 2560)
    rdV(0, 0)
    A("s_mov_b32 s16, 0")
    L_loop = name + "_loop"
    A.label(L_loop)
    Lw = name + "_now"
    A("s_cmp_lg_u32 s16, 2")
    A("s_cbranch_scc1 %s" % Lw)
    A("s_waitcnt vmcnt(0)")
    A("s_barrier")
    A("s_lshr_b32 s17, s2, 3")
    A("s_lshl_b32 s17, s17, 3")
    A("s_add_u32 s17, s17, s3")
    A("s_lshl_b32 s17, s17, 6")
    A("v_add_u32 v%d, s17, v1" % T)
    A("s_and_b32 s17, s2, 7")
    A("v_lshlrev_b32 v%d, 7, v%d" % (T+1, T))
    A("buffer_load_dword v%d, v%d, s[32:35], 0 offen" % (T+5, T+1))
    A("s_mov_b32 s23, 104858")
    A("v_mul_lo_u32 v%d, v%d, s23" % (T+1, T))
    A("v_lshrrev_b32 v%d, 26, v%d" % (T+1, T+1))
    A("v_mul_u32_u24 v%d, 640, v%d" % (T+2, T+1))
    A("v_sub_u32 v%d, v%d, v%d" % (T+2, T, T+2))
    A("v_lshl_add_u32 v%d, v%d, 3, s17" % (T+1, T+1))
    A("v_mul_u32_u24 v%d, 3456, v%d" % (T+2, T+2))
    A("v_lshl_add_u32 v%d, v%d, 6, v%d" % (T+2, T+1, T+2))
    A("v_cmp_gt_u32 vcc, 54, v%d" % (T+1))
    A("v_mov_b32 v%d, 0x7ffffff0" % (T+3))
    A("s_nop 0")
    A("v_cndmask_b32 v%d, v%d, v%d, vcc" % (T+2, T+3, T+2))
    A("buffer_load_dword v%d, v%d, s[36:39], 0 offen" % (T+5, T+2))
    A("buffer_load_dword v%d, v%d, s[40:43], 0 offen" % (T+5, T+2))
    A("v_mul_lo_u32 v%d, v%d, s23" % (T+1, T))
    A("v_lshrrev_b32 v%d, 25, v%d" % (T+1, T+1))
    A("v_mul_u32_u24 v%d, 320, v%d" % (T+2, T+1))
    A("v_sub_u32 v%d, v%d, v%d" % (T+2, T, T+2))
    A("v_lshl_add_u32 v%d, v%d, 3, s17" % (T+1, T+1))
    A("v_mul_u32_u24 v%d, 320, v%d" % (T+1, T+1))
    A("v_add_u32 v%d, v%d, v%d" % (T+2, T+2, T+1))
    A("v_lshlrev_b32 v%d, 7, v%d" % (T+2, T+2))
    A("buffer_load_dword v%d, v%d, s[44:47], 0 offen" % (T+5, T+2))
    A.label(Lw)
    for u in range(4):
        b = u & 1
        sa, sb = SS[b]
        na, nb = SS[1-b]
        A("s_waitcnt lgkmcnt(0)")
        if u < 3:
            Ld = A.newlabel(name + "_nd")
            A("s_cmp_ge_u32 s16, 2")
            A("s_cbranch_scc1 %s" % Ld)
            dma_pair()
            A.label(Ld)
        rdK(b, (u+2)*2560)
        rdV(1-b, (u+1)*2560)
        qk(na, 1-b, 0, 0)
        exps(sa, 0, 4)
        qk(na, 1-b, 0, 1)
        exps(sa, 4, 8); perm(0, sa, 0); perm(0, sa, 1)
        qk(nb, 1-b, 1, 0)
        exps(sa, 8, 12); perm(0, sa, 2); perm(0, sa, 3)
        qk(nb, 1-b, 1, 1)
        exps(sa, 12, 16); perm(0, sa, 4); perm(0, sa, 5)
        exps(sb, 0, 2); perm(0, sa, 6); perm(0, sa, 7)
        pv(0, b, 0)
        exps(sb, 2, 6)
        pv(0, b, 1)
        exps(sb, 6, 10); perm(1, sb, 0); perm(1, sb, 1); perm(1, sb, 2); perm(1, sb, 3)
        exps(sb, 10, 13)
        pv(1, b, 0)
        exps(sb, 13, 16); perm(1, sb, 4); perm(1, sb, 5); perm(1, sb, 6); perm(1, sb, 7)
        if u == 3:
            A("v_add_u32 v4, 10240, v4")
            A("v_add_u32 v5, 10240, v5")
            A("v_add_u32 v6, 10240, v6")
            A("s_add_u32 s16, s16, 1")
            A("s_cmp_lt_u32 s16, 8")
        else:
            A("s_nop 1")
        pv(1, b, 1)
    A("s_cbranch_scc1 %s" % L_loop)
    A("s_branch %s" % L_merge)

    A.label(L_slow)
    for i in range(6):
        dma_pair()
    A("s_waitcnt vmcnt(0)")
    A("s_barrier")
    for X in range(2):
        A("v_mov_b32 v%d, 0x%x" % (M[X], f32bits(-3.0e38)))
    A("s_mov_b32 s16, 0")
    L_sl = name + "_sloop"
    A.label(L_sl)
    rdK(0, 0)
    rdV(0, 0)
    A("s_waitcnt lgkmcnt(0)")
    for X in range(2):
        qk(SS[0][X], 0, X, 0); qk(SS[0][X], 0, X, 1)
    A("s_nop 7"); A("s_nop 7")
    for X in range(2):
        s = SS[0][X]
        A("v_max3_f32 v%d, v%d, v%d, v%d" % (T, s, s+1, s+2))
        for r in range(3, 15, 2):
            A("v_max3_f32 v%d, v%d, v%d, v%d" % (T, T, s+r, s+r+1))
        A("v_max_f32 v%d, v%d, v%d" % (T, T, s+15))
        A("v_mov_b32 v%d, v%d" % (T+1, T))
        A("v_mov_b32 v%d, v%d" % (T+2, T))
        A("s_nop 1")
        A("v_permlane32_swap_b32 v%d, v%d" % (T+1, T+2))
        A("s_nop 1")
        A("v_max3_f32 v%d, v%d, v%d, v%d" % (T, T+1, T+2, M[X]))
        A("v_sub_f32 v%d, v%d, v%d" % (T+1, M[X], T))
        A("v_exp_f32 v%d, v%d" % (T+1, T+1))
        A("v_mov_b32 v%d, v%d" % (M[X], T))
        for r in range(16):
            A("v_mul_f32 v%d, v%d, v%d" % (O[X]+r, T+1, O[X]+r))
        for r in range(16):
            A("v_sub_f32 v%d, v%d, v%d" % (s+r, s+r, T))
        exps(s, 0, 16)
        A("s_nop 0")
        for i in range(8):
            perm(X, s, i)
        A("s_nop 1")
        pv(X, 0, 0); pv(X, 0, 1)
    A("s_nop 7"); A("s_nop 7")
    A("v_add_u32 v4, 2560, v4")
    A("v_add_u32 v5, 2560, v5")
    A("v_add_u32 v6, 2560, v6")
    A("s_add_u32 s16, s16, 1")
    A("s_cmp_lt_u32 s16, 32")
    A("s_cbranch_scc1 %s" % L_sl)

    A.label(L_merge)
    A("s_nop 7"); A("s_nop 7")
    A("s_waitcnt vmcnt(0) lgkmcnt(0)")
    A.stamp(4)
    A("s_barrier")
    A("s_lshl_b32 s17, s3, 12")
    A("v_lshlrev_b32 v4, 4, v1")
    A("v_add_u32 v5, s17, v4")
    A("s_xor_b32 s17, s3, 4")
    A("s_lshl_b32 s17, s17, 12")
    A("v_add_u32 v6, s17, v4")
    A("v_lshlrev_b32 v7, 2, v1")
    A("v_add_u32 v8, s17, v7")
    A("s_lshl_b32 s17, s3, 12")
    A("v_add_u32 v7, s17, v7")
    L_k1 = name + "_mk1"
    A("s_cmp_eq_u32 s13, 1")
    A("s_cbranch_scc1 %s" % L_k1)
    for keep in range(2):
        send = 1-keep
        if keep == 1:
            A.label(L_k1)
        for q in range(3):
            A("ds_write_b128 v5, %s offset:%d" % (vr(O[send]+4*q, 4), 1024*q))
        A("ds_write_b32 v7, v%d offset:3072" % M[send])
        A("s_waitcnt lgkmcnt(0)")
        A("s_barrier")
        for q in range(3):
            A("ds_read_b128 %s, v6 offset:%d" % (vr(O[send]+4*q, 4), 1024*q))
        A("ds_read_b32 v%d, v8 offset:3072" % M[send])
        A("s_waitcnt lgkmcnt(0)")
        A("v_max_f32 v%d, v%d, v%d" % (T, M[keep], M[send]))
        A("v_sub_f32 v%d, v%d, v%d" % (T+1, M[keep], T))
        A("v_sub_f32 v%d, v%d, v%d" % (T+2, M[send], T))
        A("v_exp_f32 v%d, v%d" % (T+1, T+1))
        A("v_exp_f32 v%d, v%d" % (T+2, T+2))
        A("s_nop 0")
        for r in range(12):
            A("v_mul_f32 v%d, v%d, v%d" % (O[keep]+r, T+1, O[keep]+r))
        for r in range(12):
            A("v_fma_f32 v%d, v%d, v%d, v%d" % (O[keep]+r, T+2, O[send]+r, O[keep]+r))
        A("v_mov_b32 v%d, v%d" % (T+1, O[keep]+8))
        A("v_mov_b32 v%d, v%d" % (T+2, O[keep]+8))
        A("s_nop 1")
        A("v_permlane32_swap_b32 v%d, v%d" % (T+1, T+2))
        A("s_nop 1")
        A("v_rcp_f32 v%d, v%d" % (T+2, T+2))
        A("s_nop 0")
        for r in range(12):
            A("v_mul_f32 v%d, v%d, v%d" % (O[keep]+r, T+2, O[keep]+r))
        for i in range(6):
            A("v_cvt_pk_bf16_f32 v%d, v%d, v%d" % (T+4+i, O[keep]+2*i, O[keep]+2*i+1))
        A("v_mul_u32_u24 v9, 40, v2")
        A("v_lshl_add_u32 v9, v3, 3, v9")
        A("v_add_u32 v9, s19, v9")
        A("v_add_u32 v9, 0x%x, v9" % (WS_O + 1280*keep))
        A("buffer_store_dwordx2 %s, v9, s[8:11], 0 offen" % vr(T+4, 2))
        A("buffer_store_dwordx2 %s, v9, s[8:11], 0 offen offset:16" % vr(T+6, 2))
        A("s_mov_b64 exec, s[20:21]")
        A("buffer_store_dwordx2 %s, v9, s[8:11], 0 offen offset:32" % vr(T+8, 2))
        A("s_mov_b64 exec, -1")
        if keep == 0:
            A("s_branch %s" % L_end)
    A.label(L_end)
    A.stamp(5)
    A.rstamp(7)
    A.dump_stamps(8, WS_DBG + dbgoff)
    A.label(name + "_exit")
    A("s_endpgm")
    return kernel_header(name) + A.text() + kernel_desc(name, 256 if stamps else 192, 102 if stamps else 56)
```

```python
import math

S, D, H, DH, F = 2048, 640, 32, 20, 1728
KA_X, KA_WQ, KA_WK, KA_WV, KA_WO, KA_BX, KA_WR, KA_WG, KA_WU, KA_WD, KA_OUT, KA_DBG, KA_WS = [8*i for i in range(13)]
WS_Q   = 0x000000
WS_KV  = 0x280000
WS_KN  = 0x2A8000
WS_ST  = 0x2A9000
WS_O   = 0x300000
WS_H   = 0x580000
WS_GU  = 0x800000
WS_SEL = 0x810000
WS_Y = 0x811000
WS_CNT = 0x814000
WS_DBG = 0x900000
WS_END = 0x1400000
ACT_BYTES = S*D*2

def f32bits(x):
    import struct
    return struct.unpack("<I", struct.pack("<f", x))[0]

class Asm:
    def __init__(self):
        self.lines = []
        self.nlabel = 0
    def __call__(self, s):
        for l in s.strip("\n").split("\n"):
            self.lines.append("    " + l.strip())
    def label(self, name):
        self.lines.append(name + ":")
    def newlabel(self, p="L"):
        self.nlabel += 1
        return "%s_%d" % (p, self.nlabel)
    def comment(self, s):
        self.lines.append("    ; " + s)
    def stamp(self, i):
        if getattr(self, "stamps", False):
            self("s_memtime s[%d:%d]" % (80+2*i, 81+2*i))
            self("s_waitcnt lgkmcnt(0)")
            self.nstamp = max(getattr(self, "nstamp", 0), i+1)
    def rstamp(self, i):
        if getattr(self, "stamps", False):
            self("s_memrealtime s[%d:%d]" % (80+2*i, 81+2*i))
            self("s_waitcnt lgkmcnt(0)")
            self.nstamp = max(getattr(self, "nstamp", 0), i+1)
    def dump_stamps(self, srdws, region):
        if not getattr(self, "stamps", False): return
        self("s_lshl_b32 s78, s2, 4")
        self("s_add_u32 s78, s78, s3")
        self("s_lshl_b32 s78, s78, 6")
        self("s_add_u32 s78, s78, 0x%x" % region)
        self("v_mov_b32 v250, s78")
        for i in range(self.nstamp):
            self("v_mov_b32 v251, s%d" % (80+2*i))
            self("buffer_store_dword v251, v250, s[%d:%d], 0 offen offset:%d" % (srdws, srdws+3, 4*i))
    def text(self):
        return "\n".join(self.lines) + "\n"

def vr(a, n=1):
    return "v%d" % a if n == 1 else "v[%d:%d]" % (a, a+n-1)
def sr(a, n=1):
    return "s%d" % a if n == 1 else "s[%d:%d]" % (a, a+n-1)

def srd(A, d, base, nbytes):
    A("s_mov_b32 s%d, s%d" % (d, base))
    A("s_and_b32 s%d, s%d, 0xffff" % (d+1, base+1))
    A("s_mov_b32 s%d, 0x%x" % (d+2, nbytes))
    A("s_mov_b32 s%d, 0x00020000" % (d+3))

def kernel_header(name):
    return """.text
.globl %s
.p2align 8
.type %s,@function
%s:
""" % (name, name, name)

def kernel_desc(name, vgpr, sgpr):
    acc = ((vgpr + 3)//4)*4
    return """.section .rodata,"a"
.p2align 6
.amdhsa_kernel %s
  .amdhsa_next_free_vgpr %d
  .amdhsa_next_free_sgpr %d
  .amdhsa_accum_offset %d
  .amdhsa_group_segment_fixed_size 0
  .amdhsa_kernarg_size 104
  .amdhsa_user_sgpr_count 2
  .amdhsa_user_sgpr_kernarg_segment_ptr 1
  .amdhsa_system_sgpr_workgroup_id_x 1
.end_amdhsa_kernel
""" % (name, vgpr, sgpr, acc)

def reduce4groups(A, v, t0, t1):
    A("v_mov_b32 v%d, v%d" % (t0, v))
    A("v_mov_b32 v%d, v%d" % (t1, v))
    A("s_nop 1")
    A("v_permlane32_swap_b32 v%d, v%d" % (t0, t1))
    A("s_nop 1")
    A("v_add_f32 v%d, v%d, v%d" % (v, t0, t1))
    A("v_mov_b32 v%d, v%d" % (t0, v))
    A("v_mov_b32 v%d, v%d" % (t1, v))
    A("s_nop 1")
    A("v_permlane16_swap_b32 v%d, v%d" % (t0, t1))
    A("s_nop 1")
    A("v_add_f32 v%d, v%d, v%d" % (v, t0, t1))


def code_touch(A, target, endlabel, nbytes, vlane, vt, stag):
    L = A.newlabel(stag)
    A("s_getpc_b64 s[50:51]")
    A.label(L)
    A("s_add_u32 s50, s50, %s-%s" % (target, L))
    A("s_addc_u32 s51, s51, 0")
    A("v_lshlrev_b32 v%d, 6, v%d" % (vt+3, vlane))
    for i in range((nbytes + 4095)//4096):
        A("v_add_u32 v%d, %d, v%d" % (vt, 4096*i, vt+3))
        A("v_min_u32 v%d, %s-%s, v%d" % (vt, endlabel, target, vt))
        A("v_mov_b32 v%d, s51" % (vt+1))
        A("v_add_co_u32 v%d, vcc, s50, v%d" % (vt, vt))
        A("v_addc_co_u32 v%d, vcc, 0, v%d, vcc" % (vt+1, vt+1))
        A("global_load_dword v%d, v[%d:%d], off" % (vt+2, vt, vt+1))
```

```python
from common import *

LDS_ATTN = 163840
MERGE_BASE = 0x18000
L_XR = 61440
SPIN_LIMIT = 200000

def oproj_tail(A, name, c):
    TL = [0, 1, 2] if c == 0 else [3, 4]
    nt = len(TL)
    AF = [16, 28]; XF = [40, 44]; ACC = 48; XR = 60; WR = 66; ONES = 72; ST = 76; U = 80
    A("v_and_b32 v2, 15, v1")
    A("v_lshrrev_b32 v3, 4, v1")
    A("s_lshr_b32 s36, s2, 3")
    A("s_and_b32 s37, s2, 7")
    A("s_lshl_b32 s38, s36, 6")
    A("s_lshl_b32 s39, s12, 4")
    A("s_add_u32 s38, s38, s39")
    A("v_add_u32 v6, s38, v2")
    A("s_mul_i32 s39, s37, 160")
    A("s_mul_i32 s43, s12, 12288")
    A("s_add_u32 s43, s43, %d" % L_XR)
    A("s_lshl_b32 s45, s12, 10")
    A("s_mul_i32 s46, s12, 5120")
    A("s_mul_i32 s47, s12, 40960")
    if c == 0:
        A("v_lshrrev_b32 v7, 2, v1")
        A("v_bfe_u32 v8, v1, 4, 2")
        A("v_and_b32 v10, 3, v1")
        A("v_xor_b32 v8, v8, v10")
        A("v_add_u32 v7, s38, v7")
        A("v_mul_u32_u24 v7, 1280, v7")
        A("v_lshl_add_u32 v7, v8, 4, v7")
        A("v_add_u32 v7, 0x%x, v7" % WS_O)
        A("v_add_u32 v9, 256, v1")
    else:
        A("s_lshl_b32 s40, s12, 6")
        A("v_add_u32 v9, s40, v1")
    A("v_mul_u32_u24 v10, 0x199a, v9")
    A("v_lshrrev_b32 v10, 16, v10")
    A("v_mul_u32_u24 v11, 10, v10")
    A("v_sub_u32 v11, v9, v11")
    A("v_mul_u32_u24 v10, 1280, v10")
    A("v_lshl_add_u32 v10, v11, 4, v10")
    A("v_add_u32 v9, s39, v10")
    def dma_x(p, i):
        A("s_add_u32 s40, s43, %d" % ((p % 3)*4096 + i*1024))
        A("s_mov_b32 m0, s40")
        A("s_movk_i32 s41, %d" % (64*(4*p+i)))
        A("buffer_load_dwordx4 v7, s[8:11], s41 offen sc0 sc1 lds")
    def dma_w(p, i):
        if c == 0:
            A("s_add_u32 s40, s46, %d" % ((p % 3)*20480 + 4096))
            A("s_mov_b32 m0, s40")
            A("s_add_u32 s41, s47, %d" % (4*p*40960))
        else:
            A("s_add_u32 s40, s45, %d" % ((p % 3)*20480 + i*5120))
            A("s_mov_b32 m0, s40")
            A("s_mov_b32 s41, %d" % ((4*p+i)*40960))
        A("buffer_load_dwordx4 v9, s[32:35], s41 offen lds")
    nw = 1 if c == 0 else 4
    for p in range(2):
        for i in range(nw):
            dma_w(p, i)
    A.stamp(1)
    A("s_waitcnt vmcnt(%d)" % (2*nw))
    A.stamp(2)
    A("s_barrier")
    if c == 0:
        Lnp = A.newlabel(name+"_nopoll"); Lp = A.newlabel(name+"_poll"); Ld = A.newlabel(name+"_polled")
        A("s_cmp_lg_u32 s3, 0")
        A("s_cbranch_scc1 %s" % Lnp)
        A("s_lshl_b32 s40, s36, 8")
        A("s_add_u32 s40, s40, 0x%x" % WS_CNT)
        A("v_mov_b32 v10, s40")
        A("v_mov_b32 v11, 1")
        A("s_mov_b64 exec, 1")
        A("buffer_atomic_add v11, v10, s[8:11], 0 offen sc1")
        A("s_mov_b32 s41, 0")
        A.label(Lp)
        A("buffer_load_dword v11, v10, s[8:11], 0 offen sc0 sc1")
        A("s_waitcnt vmcnt(0)")
        A("v_readfirstlane_b32 s40, v11")
        A("s_nop 3")
        A("s_cmp_ge_u32 s40, 8")
        A("s_cbranch_scc1 %s" % Ld)
        A("s_sleep 2")
        A("s_add_u32 s41, s41, 1")
        A("s_cmp_lt_u32 s41, %d" % SPIN_LIMIT)
        A("s_cbranch_scc1 %s" % Lp)
        A.label(Ld)
        A("s_mov_b64 exec, -1")
        A.label(Lnp)
    A("s_barrier")
    A.stamp(3)
    if c == 0:
        for p in range(2):
            for i in range(4):
                dma_x(p, i)
    A("v_lshrrev_b32 v14, 2, v2")
    A("v_and_b32 v15, 3, v2")
    A("v_lshl_add_u32 v14, v3, 2, v14")
    A("v_mul_u32_u24 v14, 160, v14")
    A("v_lshl_add_u32 v14, v15, 3, v14")
    A("v_lshrrev_b32 v%d, 1, v3" % U)
    A("v_lshrrev_b32 v%d, 2, v2" % (U+1))
    A("v_xor_b32 v%d, v%d, v%d" % (U, U, U+1))
    A("v_xor_b32 v%d, 2, v%d" % (U+1, U))
    A("v_and_b32 v%d, 1, v3" % (U+2))
    A("v_lshlrev_b32 v%d, 3, v%d" % (U+2, U+2))
    A("v_lshl_add_u32 v%d, v2, 6, v%d" % (U+2, U+2))
    A("v_add_u32 v%d, s43, v%d" % (U+2, U+2))
    A("v_lshl_add_u32 v10, v%d, 4, v%d" % (U, U+2))
    A("v_lshl_add_u32 v11, v%d, 4, v%d" % (U+1, U+2))
    A("v_mul_u32_u24 v12, 1280, v6")
    A("v_lshl_add_u32 v13, v3, 3, s39")
    A("v_add_u32 v12, v12, v13")
    for i in range(4):
        A("v_mov_b32 v%d, 0x3f803f80" % (ONES+i))
    for i in range(4):
        A("v_mov_b32 v%d, 0" % (ST+i))
    A("s_waitcnt vmcnt(0)")
    A("s_barrier")
    A.stamp(6)
    def reads(s):
        b = s & 1
        xo = ((s >> 2) % 3)*4096 + (s & 3)*1024
        A("ds_read_b64 %s, v10 offset:%d" % (vr(XF[b], 2), xo))
        A("ds_read_b64 %s, v11 offset:%d" % (vr(XF[b]+2, 2), xo))
        off = ((s >> 2) % 3)*20480 + (s & 3)*5120
        for q, j in enumerate(TL):
            A("ds_read_b64_tr_b16 %s, v14 offset:%d" % (vr(AF[b]+4*q, 2), off+32*j))
            A("ds_read_b64_tr_b16 %s, v14 offset:%d" % (vr(AF[b]+4*q+2, 2), off+2560+32*j))
    reads(0)
    for s in range(20):
        b = s & 1
        p, ks = divmod(s, 4)
        A("s_waitcnt lgkmcnt(0)")
        if ks == 3 and p < 4:
            A("s_waitcnt vmcnt(%d)" % ((4 if c == 0 else 3) if p <= 2 else 0))
            A("s_barrier")
        if p <= 2:
            if c == 0:
                for i in ([0, 1], [2], [3], [])[ks]:
                    dma_x(p+2, i)
                if ks == 3:
                    dma_w(p+2, 0)
            else:
                dma_w(p+2, ks)
        if s == 16:
            for q, j in enumerate(TL):
                A("buffer_load_dwordx2 %s, v12, s[56:59], 0 offen offset:%d" % (vr(XR+2*q, 2), 32*j))
            for q, j in enumerate(TL):
                A("buffer_load_dwordx2 %s, v13, s[60:63], 0 offen offset:%d" % (vr(WR+2*q, 2), 32*j))
        if s < 19:
            reads(s+1)
        for q in range(nt):
            A("v_mfma_f32_16x16x32_bf16 %s, %s, %s, %s" % (vr(ACC+4*q, 4), vr(AF[b]+4*q, 4), vr(XF[b], 4), "0" if s == 0 else vr(ACC+4*q, 4)))
    A("s_nop 7")
    A("s_nop 3")
    A("s_waitcnt vmcnt(0)")
    A.stamp(7)
    A("v_add_u32 v7, 0x%x, v12" % WS_H)
    for q, j in enumerate(TL):
        a = ACC+4*q
        W = U + 16*q
        A("v_cvt_pk_bf16_f32 v%d, v%d, v%d" % (W, a, a+1))
        A("v_cvt_pk_bf16_f32 v%d, v%d, v%d" % (W+1, a+2, a+3))
        for h in range(2):
            A("v_lshlrev_b32 v%d, 16, v%d" % (W+2+2*h, W+h))
            A("v_and_b32 v%d, 0xffff0000, v%d" % (W+3+2*h, W+h))
            A("v_lshlrev_b32 v%d, 16, v%d" % (W+6+2*h, XR+2*q+h))
            A("v_and_b32 v%d, 0xffff0000, v%d" % (W+7+2*h, XR+2*q+h))
        for r in range(4):
            A("v_add_f32 v%d, v%d, v%d" % (W+2+r, W+2+r, W+6+r))
        A("v_cvt_pk_bf16_f32 v%d, v%d, v%d" % (W+10, W+2, W+3))
        A("v_cvt_pk_bf16_f32 v%d, v%d, v%d" % (W+11, W+4, W+5))
        A("buffer_store_dwordx2 %s, v7, s[8:11], 0 offen offset:%d" % (vr(W+10, 2), 32*j))
        for h in range(2):
            A("v_dot2c_f32_bf16 v%d, v%d, v%d" % (ST, W+10+h, ONES))
            A("v_dot2c_f32_bf16 v%d, v%d, v%d" % (ST+1, W+10+h, W+10+h))
            A("v_dot2c_f32_bf16 v%d, v%d, v%d" % (ST+2, W+10+h, WR+2*q+h))
    A("s_nop 3")
    reduce4groups(A, ST, AF[0], AF[0]+1)
    reduce4groups(A, ST+1, AF[0], AF[0]+1)
    reduce4groups(A, ST+2, AF[0], AF[0]+1)
    for gi in (1, 2, 3):
        A("v_cmp_eq_u32 vcc, %d, v3" % gi)
        A("s_nop 1")
        A("v_cndmask_b32 v%d, v%d, v%d, vcc" % (ST, ST, ST+gi))
    A("v_lshlrev_b32 v8, 4, v6")
    A("v_lshl_add_u32 v8, v3, 2, v8")
    A("v_add_u32 v8, 0x%x, v8" % WS_ST)
    A("buffer_atomic_add_f32 v%d, v8, s[8:11], 0 offen" % ST)

THR2 = 2200.0

def wave_max(A, v, t0, t1):
    for ror in (8, 4, 2, 1):
        A("s_nop 1")
        A("v_max_f32_dpp v%d, v%d, v%d row_ror:%d row_mask:0xf bank_mask:0xf" % (v, v, v, ror))
    for sw in ("v_permlane16_swap_b32", "v_permlane32_swap_b32"):
        A("v_mov_b32 v%d, v%d" % (t0, v))
        A("v_mov_b32 v%d, v%d" % (t1, v))
        A("s_nop 1")
        A("%s v%d, v%d" % (sw, t0, t1))
        A("s_nop 1")
        A("v_max_f32 v%d, v%d, v%d" % (v, t0, t1))

def gen_attn2(name, force_slow=False, stamps=False, dbgoff=0):
    A = Asm()
    A.stamps = stamps
    L_end = name + "_end"
    Q1 = [16, 24]; Q2 = [20, 28]
    KL = [32, 40]; KH = [36, 44]; VF = [48, 56]
    SS = [[64, 80], [96, 112]]
    P = [128, 136]; O = [144, 160]; M = [176, 177]; T = 178
    A("s_cmp_ge_u32 s2, 256")
    A("s_cbranch_scc1 %s_exit" % name)
    A("s_load_dwordx2 s[4:5], s[0:1], %d" % KA_WS)
    A("s_load_dwordx2 s[24:25], s[0:1], %d" % KA_WO)
    A("s_load_dwordx4 s[28:31], s[0:1], %d" % KA_WG)
    A("s_load_dwordx2 s[26:27], s[0:1], %d" % KA_WD)
    A("s_load_dwordx2 s[52:53], s[0:1], %d" % KA_X)
    A("s_load_dwordx2 s[54:55], s[0:1], %d" % KA_WR)
    A("s_load_dwordx2 s[48:49], s[0:1], %d" % KA_DBG)
    A("v_and_b32 v1, 63, v0")
    A("v_and_b32 v2, 31, v0")
    A("v_lshrrev_b32 v3, 5, v1")
    A("v_lshrrev_b32 v7, 6, v0")
    A("s_nop 0")
    A("v_readfirstlane_b32 s3, v7")
    A("s_mov_b32 s14, 0x000fffff")
    A("s_mov_b32 s15, 0x000fffff")
    A("s_mov_b32 s18, 0x07060302")
    A("s_waitcnt lgkmcnt(0)")
    A.stamp(0)
    srd(A, 8, 4, WS_END)
    A("s_and_b32 s12, s3, 3")
    A("s_lshr_b32 s13, s3, 2")
    A("s_lshl_b32 s19, s2, 3")
    A("s_lshl_b32 s17, s12, 1")
    A("s_add_u32 s19, s19, s17")
    A("s_mul_i32 s19, s19, 1280")
    A("v_mul_u32_u24 v8, 40, v2")
    A("v_lshl_add_u32 v8, v3, 4, v8")
    A("v_add_u32 v8, s19, v8")
    for X in range(2):
        for r in range(4):
            A("v_mov_b32 v%d, 0" % (Q2[X]+r))
    for X in range(2):
        A("buffer_load_dwordx4 %s, v8, s[8:11], 0 offen offset:%d" % (vr(Q1[X], 4), 1280*X))
    A("s_mov_b32 s20, -1")
    A("s_mov_b32 s21, 0")
    A("s_mov_b64 exec, s[20:21]")
    for X in range(2):
        A("buffer_load_dwordx2 %s, v8, s[8:11], 0 offen offset:%d" % (vr(Q2[X], 2), 1280*X+32))
    A("s_mov_b64 exec, -1")
    A("v_lshlrev_b32 v9, 3, v1")
    A("v_add_u32 v9, 0x%x, v9" % WS_KN)
    A("buffer_load_dwordx2 v[10:11], v9, s[8:11], 0 offen")
    A("v_lshlrev_b32 v7, 4, v1")
    A("v_add_u32 v7, 0x%x, v7" % WS_KV)
    A("s_lshl_b32 s22, s3, 10")
    def dma_pair():
        A("s_mov_b32 m0, s22")
        A("s_add_u32 s23, s22, 81920")
        A("buffer_load_dwordx4 v7, s[8:11], s22 offen lds")
        A("s_mov_b32 m0, s23")
        A("s_add_u32 s22, s22, 8192")
        A("buffer_load_dwordx4 v7, s[8:11], s23 offen lds")
    for i in range(4):
        dma_pair()
    srd(A, 32, 24, D*D*2); srd(A, 36, 28, D*F*2); srd(A, 40, 30, D*F*2); srd(A, 44, 26, D*F*2)
    srd(A, 56, 52, ACT_BYTES); srd(A, 60, 54, D*2); srd(A, 64, 48, 256)
    for X in range(2):
        for r in range(16):
            A("v_mov_b32 v%d, 0" % (O[X]+r))
        A("v_mov_b32 v%d, 0" % M[X])
    for b in range(2):
        A("v_mov_b32 v%d, 0" % (KH[b]+2))
        A("v_mov_b32 v%d, 0" % (KH[b]+3))
    A("v_cmp_eq_u32 vcc, 20, v2")
    A("v_mov_b32 v12, 0x3f803f80")
    A("s_nop 1")
    A("v_cndmask_b32 v12, 0, v12, vcc")
    for b in range(2):
        for r in range(8):
            A("v_mov_b32 v%d, v12" % (VF[b]+r))
    A("s_mul_i32 s17, s13, 81920")
    A("v_lshlrev_b32 v4, 4, v1")
    A("v_add_u32 v4, s17, v4")
    A("v_lshlrev_b32 v5, 3, v2")
    A("v_add_u32 v5, s17, v5")
    A("v_min_u32 v6, 19, v2")
    A("v_mul_u32_u24 v12, 20, v3")
    A("v_add_u32 v6, v6, v12")
    A("v_lshlrev_b32 v6, 4, v6")
    A("v_add_u32 v6, s17, v6")
    A("s_waitcnt vmcnt(8)")
    A("v_max_f32 v10, v10, v11")
    wave_max(A, 10, 12, 13)
    for X in range(2):
        A("v_mov_b32 v%d, 0" % (12+X))
    for X in range(2):
        for r in range(4):
            A("v_dot2c_f32_bf16 v%d, v%d, v%d" % (12+X, Q1[X]+r, Q1[X]+r))
        for r in range(2):
            A("v_dot2c_f32_bf16 v%d, v%d, v%d" % (12+X, Q2[X]+r, Q2[X]+r))
    A("s_nop 3")
    A("v_max_f32 v12, v12, v13")
    A("v_mov_b32 v13, v12")
    A("v_mov_b32 v14, v12")
    A("s_nop 1")
    A("v_permlane32_swap_b32 v13, v14")
    A("s_nop 1")
    A("v_add_f32 v12, v13, v14")
    A("v_mul_f32 v12, v12, v10")
    A("v_mov_b32 v13, 0x%x" % f32bits(THR2))
    A("v_cmp_nle_f32 vcc, v12, v13")
    A("s_waitcnt vmcnt(0)")
    A("s_barrier")
    L_slow = name + "_slow"; L_merge = name + "_merge"
    if force_slow:
        A("s_branch %s" % L_slow)
    else:
        A("s_cmp_lg_u64 vcc, 0")
        A("s_cbranch_scc1 %s" % L_slow)

    def rdK(b, off):
        A("ds_read_b128 %s, v4 offset:%d" % (vr(KL[b], 4), off))
        A("ds_read_b64 %s, v5 offset:%d" % (vr(KH[b], 2), off+1024))
    def rdV(b, off):
        A("s_mov_b64 exec, s[14:15]")
        A("ds_read_b128 %s, v6 offset:%d" % (vr(VF[b], 4), off+1280))
        A("ds_read_b128 %s, v6 offset:%d" % (vr(VF[b]+4, 4), off+1920))
        A("s_mov_b64 exec, -1")
    def qk(dst, kb, X, part):
        if part == 0:
            A("v_mfma_f32_32x32x16_bf16 %s, %s, %s, 0" % (vr(dst, 16), vr(KL[kb], 4), vr(Q1[X], 4)))
        else:
            A("v_mfma_f32_32x32x16_bf16 %s, %s, %s, %s" % (vr(dst, 16), vr(KH[kb], 4), vr(Q2[X], 4), vr(dst, 16)))
    def pv(X, vb, m):
        A("v_mfma_f32_32x32x16_bf16 %s, %s, %s, %s" % (vr(O[X], 16), vr(VF[vb]+4*m, 4), vr(P[X]+4*m, 4), vr(O[X], 16)))
    def exps(s, lo, hi):
        for r in range(lo, hi):
            A("v_exp_f32 v%d, v%d" % (s+r, s+r))
    def perm(X, s, i):
        A("v_perm_b32 v%d, v%d, v%d, s18" % (P[X]+i, s+2*i+1, s+2*i))

    rdK(0, 0)
    A("s_waitcnt lgkmcnt(0)")
    for X in range(2):
        qk(SS[0][X], 0, X, 0); qk(SS[0][X], 0, X, 1)
    rdK(1, 2560)
    rdV(0, 0)
    A("s_mov_b32 s16, 0")
    L_loop = name + "_loop"
    A.label(L_loop)
    Lw = name + "_now"
    A("s_cmp_lg_u32 s16, 2")
    A("s_cbranch_scc1 %s" % Lw)
    A("s_waitcnt vmcnt(0)")
    A("s_barrier")
    A("s_lshr_b32 s17, s2, 3")
    A("s_lshl_b32 s17, s17, 3")
    A("s_add_u32 s17, s17, s3")
    A("s_lshl_b32 s17, s17, 6")
    A("v_add_u32 v%d, s17, v1" % T)
    A("s_and_b32 s17, s2, 7")
    A("v_lshlrev_b32 v%d, 7, v%d" % (T+1, T))
    A("buffer_load_dword v%d, v%d, s[32:35], 0 offen" % (T+5, T+1))
    A("s_mov_b32 s23, 104858")
    A("v_mul_lo_u32 v%d, v%d, s23" % (T+1, T))
    A("v_lshrrev_b32 v%d, 26, v%d" % (T+1, T+1))
    A("v_mul_u32_u24 v%d, 640, v%d" % (T+2, T+1))
    A("v_sub_u32 v%d, v%d, v%d" % (T+2, T, T+2))
    A("v_lshl_add_u32 v%d, v%d, 3, s17" % (T+1, T+1))
    A("v_mul_u32_u24 v%d, 3456, v%d" % (T+2, T+2))
    A("v_lshl_add_u32 v%d, v%d, 6, v%d" % (T+2, T+1, T+2))
    A("v_cmp_gt_u32 vcc, 54, v%d" % (T+1))
    A("v_mov_b32 v%d, 0x7ffffff0" % (T+3))
    A("s_nop 0")
    A("v_cndmask_b32 v%d, v%d, v%d, vcc" % (T+2, T+3, T+2))
    A("buffer_load_dword v%d, v%d, s[36:39], 0 offen" % (T+5, T+2))
    A("buffer_load_dword v%d, v%d, s[40:43], 0 offen" % (T+5, T+2))
    A("v_mul_lo_u32 v%d, v%d, s23" % (T+1, T))
    A("v_lshrrev_b32 v%d, 25, v%d" % (T+1, T+1))
    A("v_mul_u32_u24 v%d, 320, v%d" % (T+2, T+1))
    A("v_sub_u32 v%d, v%d, v%d" % (T+2, T, T+2))
    A("v_lshl_add_u32 v%d, v%d, 3, s17" % (T+1, T+1))
    A("v_mul_u32_u24 v%d, 320, v%d" % (T+1, T+1))
    A("v_add_u32 v%d, v%d, v%d" % (T+2, T+2, T+1))
    A("v_lshlrev_b32 v%d, 7, v%d" % (T+2, T+2))
    A("buffer_load_dword v%d, v%d, s[44:47], 0 offen" % (T+5, T+2))
    A.label(Lw)
    for u in range(4):
        b = u & 1
        sa, sb = SS[b]
        na, nb = SS[1-b]
        A("s_waitcnt lgkmcnt(0)")
        if u < 3:
            Ld = A.newlabel(name + "_nd")
            A("s_cmp_ge_u32 s16, 2")
            A("s_cbranch_scc1 %s" % Ld)
            dma_pair()
            A.label(Ld)
        rdK(b, (u+2)*2560)
        rdV(1-b, (u+1)*2560)
        qk(na, 1-b, 0, 0)
        exps(sa, 0, 4)
        qk(na, 1-b, 0, 1)
        exps(sa, 4, 8); perm(0, sa, 0); perm(0, sa, 1)
        qk(nb, 1-b, 1, 0)
        exps(sa, 8, 12); perm(0, sa, 2); perm(0, sa, 3)
        qk(nb, 1-b, 1, 1)
        exps(sa, 12, 16); perm(0, sa, 4); perm(0, sa, 5)
        exps(sb, 0, 2); perm(0, sa, 6); perm(0, sa, 7)
        pv(0, b, 0)
        exps(sb, 2, 6)
        pv(0, b, 1)
        exps(sb, 6, 10); perm(1, sb, 0); perm(1, sb, 1); perm(1, sb, 2); perm(1, sb, 3)
        exps(sb, 10, 13)
        pv(1, b, 0)
        exps(sb, 13, 16); perm(1, sb, 4); perm(1, sb, 5); perm(1, sb, 6); perm(1, sb, 7)
        if u == 3:
            A("v_add_u32 v4, 10240, v4")
            A("v_add_u32 v5, 10240, v5")
            A("v_add_u32 v6, 10240, v6")
            A("s_add_u32 s16, s16, 1")
            A("s_cmp_lt_u32 s16, 8")
        else:
            A("s_nop 1")
        pv(1, b, 1)
    A("s_cbranch_scc1 %s" % L_loop)
    A("s_branch %s" % L_merge)

    A.label(L_slow)
    for i in range(6):
        dma_pair()
    A("s_waitcnt vmcnt(0)")
    A("s_barrier")
    for X in range(2):
        A("v_mov_b32 v%d, 0x%x" % (M[X], f32bits(-3.0e38)))
    A("s_mov_b32 s16, 0")
    L_sl = name + "_sloop"
    A.label(L_sl)
    rdK(0, 0)
    rdV(0, 0)
    A("s_waitcnt lgkmcnt(0)")
    for X in range(2):
        qk(SS[0][X], 0, X, 0); qk(SS[0][X], 0, X, 1)
    A("s_nop 7"); A("s_nop 7")
    for X in range(2):
        s = SS[0][X]
        A("v_max3_f32 v%d, v%d, v%d, v%d" % (T, s, s+1, s+2))
        for r in range(3, 15, 2):
            A("v_max3_f32 v%d, v%d, v%d, v%d" % (T, T, s+r, s+r+1))
        A("v_max_f32 v%d, v%d, v%d" % (T, T, s+15))
        A("v_mov_b32 v%d, v%d" % (T+1, T))
        A("v_mov_b32 v%d, v%d" % (T+2, T))
        A("s_nop 1")
        A("v_permlane32_swap_b32 v%d, v%d" % (T+1, T+2))
        A("s_nop 1")
        A("v_max3_f32 v%d, v%d, v%d, v%d" % (T, T+1, T+2, M[X]))
        A("v_sub_f32 v%d, v%d, v%d" % (T+1, M[X], T))
        A("v_exp_f32 v%d, v%d" % (T+1, T+1))
        A("v_mov_b32 v%d, v%d" % (M[X], T))
        for r in range(16):
            A("v_mul_f32 v%d, v%d, v%d" % (O[X]+r, T+1, O[X]+r))
        for r in range(16):
            A("v_sub_f32 v%d, v%d, v%d" % (s+r, s+r, T))
        exps(s, 0, 16)
        A("s_nop 0")
        for i in range(8):
            perm(X, s, i)
        A("s_nop 1")
        pv(X, 0, 0); pv(X, 0, 1)
    A("s_nop 7"); A("s_nop 7")
    A("v_add_u32 v4, 2560, v4")
    A("v_add_u32 v5, 2560, v5")
    A("v_add_u32 v6, 2560, v6")
    A("s_add_u32 s16, s16, 1")
    A("s_cmp_lt_u32 s16, 32")
    A("s_cbranch_scc1 %s" % L_sl)

    A.label(L_merge)
    A("s_nop 7"); A("s_nop 7")
    A("s_waitcnt vmcnt(0) lgkmcnt(0)")
    A.stamp(4)
    A("s_barrier")
    A("s_lshl_b32 s17, s3, 12")
    A("s_add_u32 s17, s17, %d" % MERGE_BASE)
    A("v_lshlrev_b32 v4, 4, v1")
    A("v_add_u32 v5, s17, v4")
    A("v_lshlrev_b32 v7, 2, v1")
    A("v_add_u32 v7, s17, v7")
    A("s_xor_b32 s17, s17, 0x4000")
    A("v_add_u32 v6, s17, v4")
    A("v_lshlrev_b32 v8, 2, v1")
    A("v_add_u32 v8, s17, v8")
    L_k1 = name + "_mk1"
    A("s_cmp_eq_u32 s13, 1")
    A("s_cbranch_scc1 %s" % L_k1)
    for keep in range(2):
        send = 1-keep
        if keep == 1:
            A.label(L_k1)
        for q in range(3):
            A("ds_write_b128 v5, %s offset:%d" % (vr(O[send]+4*q, 4), 1024*q))
        A("ds_write_b32 v7, v%d offset:3072" % M[send])
        A("s_waitcnt lgkmcnt(0)")
        A("s_barrier")
        for q in range(3):
            A("ds_read_b128 %s, v6 offset:%d" % (vr(O[send]+4*q, 4), 1024*q))
        A("ds_read_b32 v%d, v8 offset:3072" % M[send])
        A("s_waitcnt lgkmcnt(0)")
        A("v_max_f32 v%d, v%d, v%d" % (T, M[keep], M[send]))
        A("v_sub_f32 v%d, v%d, v%d" % (T+1, M[keep], T))
        A("v_sub_f32 v%d, v%d, v%d" % (T+2, M[send], T))
        A("v_exp_f32 v%d, v%d" % (T+1, T+1))
        A("v_exp_f32 v%d, v%d" % (T+2, T+2))
        A("s_nop 0")
        for r in range(12):
            A("v_mul_f32 v%d, v%d, v%d" % (O[keep]+r, T+1, O[keep]+r))
        for r in range(12):
            A("v_fma_f32 v%d, v%d, v%d, v%d" % (O[keep]+r, T+2, O[send]+r, O[keep]+r))
        A("v_mov_b32 v%d, v%d" % (T+1, O[keep]+8))
        A("v_mov_b32 v%d, v%d" % (T+2, O[keep]+8))
        A("s_nop 1")
        A("v_permlane32_swap_b32 v%d, v%d" % (T+1, T+2))
        A("s_nop 1")
        A("v_rcp_f32 v%d, v%d" % (T+2, T+2))
        A("s_nop 0")
        for r in range(12):
            A("v_mul_f32 v%d, v%d, v%d" % (O[keep]+r, T+2, O[keep]+r))
        for i in range(6):
            A("v_cvt_pk_bf16_f32 v%d, v%d, v%d" % (T+4+i, O[keep]+2*i, O[keep]+2*i+1))
        A("v_mul_u32_u24 v9, 40, v2")
        A("v_lshl_add_u32 v9, v3, 3, v9")
        A("v_add_u32 v9, s19, v9")
        A("v_add_u32 v9, 0x%x, v9" % (WS_O + 1280*keep))
        A("buffer_store_dwordx2 %s, v9, s[8:11], 0 offen sc0 sc1" % vr(T+4, 2))
        A("buffer_store_dwordx2 %s, v9, s[8:11], 0 offen offset:16 sc0 sc1" % vr(T+6, 2))
        A("s_mov_b64 exec, s[20:21]")
        A("buffer_store_dwordx2 %s, v9, s[8:11], 0 offen offset:32 sc0 sc1" % vr(T+8, 2))
        A("s_mov_b64 exec, -1")
        oproj_tail(A, name, keep)
        if keep == 0:
            A("s_branch %s" % L_end)
    A.label(L_end)
    A.stamp(5)
    A.dump_stamps(8, WS_DBG + dbgoff)
    A.label(name + "_exit")
    A("s_endpgm")
    return kernel_header(name) + A.text() + kernel_desc(name, 256 if stamps else 192, 102 if stamps else 72)
```

```python
from common import *
from k_tail import wave_sum

L_W = 0
L_XR = 61440
L_KVW = 110592
LDS_GEMM2 = 139264
CODE_TOUCH = True
QSCALE = (20.0 ** -0.5) * math.log2(math.e)

def gen_gemm2(mode, name, stamps=False, dbgoff=0):
    A = Asm(); A.stamps = stamps
    qkv = (mode == 'qkv')
    L_end = name + "_end"
    AF = [16, 36]
    KF = [56, 64]
    XF = [72, 76]
    ACC = 80
    ACCKV = 100
    CS = 108
    CSKV = 128
    SX = 136; SQ = 140; ONES = 144
    XR = 148; WR = 158
    T = 168
    A("s_cmp_ge_u32 s2, 256")
    A("s_cbranch_scc1 %s_exit" % name)
    if qkv:
        A("s_load_dwordx2 s[4:5], s[0:1], %d" % KA_X)
        A("s_load_dwordx2 s[6:7], s[0:1], %d" % KA_WQ)
        A("s_load_dwordx2 s[8:9], s[0:1], %d" % KA_WK)
        A("s_load_dwordx2 s[10:11], s[0:1], %d" % KA_WV)
        A("s_load_dwordx2 s[14:15], s[0:1], %d" % KA_WR)
    else:
        A("s_load_dwordx2 s[6:7], s[0:1], %d" % KA_WO)
        A("s_load_dwordx2 s[8:9], s[0:1], %d" % KA_X)
        A("s_load_dwordx2 s[10:11], s[0:1], %d" % KA_WR)
    A("s_load_dwordx2 s[12:13], s[0:1], %d" % KA_WS)
    A("s_and_b32 s36, s2, 7")
    A("s_lshr_b32 s37, s2, 6")
    A("s_lshl_b32 s37, s37, 3")
    A("s_add_u32 s36, s36, s37")
    A("s_lshr_b32 s37, s2, 3")
    A("s_and_b32 s37, s37, 7")
    A("v_and_b32 v1, 63, v0")
    A("v_and_b32 v2, 15, v0")
    A("v_lshrrev_b32 v3, 4, v1")
    A("v_lshrrev_b32 v5, 6, v0")
    A("s_nop 0")
    A("v_readfirstlane_b32 s3, v5")
    A("s_lshl_b32 s38, s36, 6")
    A("s_lshl_b32 s39, s3, 4")
    A("s_add_u32 s38, s38, s39")
    A("v_add_u32 v6, s38, v2")
    A("v_lshrrev_b32 v7, 2, v1")
    A("v_bfe_u32 v8, v1, 4, 2")
    A("v_and_b32 v9, 3, v1")
    A("v_xor_b32 v8, v8, v9")
    A("v_add_u32 v7, s38, v7")
    A("v_mul_u32_u24 v7, 1280, v7")
    A("v_lshl_add_u32 v7, v8, 4, v7")
    if not qkv:
        A("v_add_u32 v7, 0x%x, v7" % WS_O)
    A("s_lshl_b32 s39, s3, 6")
    A("v_add_u32 v8, s39, v1")
    A("v_add_u32 v9, 256, v1")
    A("s_mul_i32 s39, s37, 160")
    for v in (8, 9):
        A("v_mul_u32_u24 v10, 0x199a, v%d" % v)
        A("v_lshrrev_b32 v10, 16, v10")
        A("v_mul_u32_u24 v11, 10, v10")
        A("v_sub_u32 v11, v%d, v11" % v)
        A("v_mul_u32_u24 v10, 1280, v10")
        A("v_lshl_add_u32 v10, v11, 4, v10")
        A("v_add_u32 v%d, s39, v10" % v)
    A("v_lshlrev_b32 v10, 4, v1")
    A("s_mul_i32 s39, s38, 1280")
    A("v_lshlrev_b32 v11, 7, v1")
    A("v_add_u32 v11, s39, v11")
    if not qkv:
        A("v_add_u32 v11, 0x%x, v11" % WS_O)
    A("s_waitcnt lgkmcnt(0)")
    A.stamp(0)
    A.rstamp(6)
    srd(A, 28, 12, WS_END)
    if qkv:
        srd(A, 16, 4, ACT_BYTES)
    else:
        srd(A, 16, 12, WS_END)
    srd(A, 20, 6, D*D*2)
    if qkv:
        A("s_cmp_eq_u32 s37, 0")
        A("s_cselect_b32 s24, s8, s10")
        A("s_cselect_b32 s25, s9, s11")
        A("s_and_b32 s25, s25, 0xffff")
        A("s_mov_b32 s26, %d" % (D*DH*2))
        A("s_mov_b32 s27, 0x00020000")
        A("s_cmp_lt_u32 s37, 2")
        A("s_cselect_b32 s42, 0, 0x100000")
    else:
        srd(A, 24, 8, ACT_BYTES)
        srd(A, 32, 10, D*2)
    A("s_mul_i32 s43, s3, 12288")
    A("s_add_u32 s43, s43, %d" % L_XR)
    A("s_lshl_b32 s45, s3, 10")
    A("s_mul_i32 s46, s3, 5120")
    A("s_mul_i32 s47, s3, 40960")
    def dma_one(p, i):
        slot = p % 3
        if i < 4:
            s = 4*p + i
            A("s_add_u32 s40, s43, %d" % (slot*4096 + i*1024))
            A("s_mov_b32 m0, s40")
            A("s_movk_i32 s41, %d" % (64*s))
            A("buffer_load_dwordx4 v7, s[16:19], s41 offen lds")
        elif i < 8:
            a = 4*p + i - 4
            A("s_add_u32 s40, s45, %d" % (slot*20480 + (i-4)*5120))
            A("s_mov_b32 m0, s40")
            A("s_mov_b32 s41, %d" % (a*40960))
            A("buffer_load_dwordx4 v8, s[20:23], s41 offen lds")
        else:
            A("s_add_u32 s40, s46, %d" % (slot*20480 + 4096))
            A("s_mov_b32 m0, s40")
            A("s_add_u32 s41, s47, %d" % (4*p*40960))
            A("buffer_load_dwordx4 v9, s[20:23], s41 offen lds")
    def dma_phase(p):
        for i in range(9):
            dma_one(p, i)
    nfirst = 0
    if not qkv:
        A("v_mul_u32_u24 v12, 1280, v6")
        A("s_mul_i32 s39, s37, 160")
        A("v_lshl_add_u32 v13, v3, 3, s39")
        A("v_add_u32 v12, v12, v13")
    dma_phase(0)
    if qkv:
        for i in range(7):
            A("s_add_u32 s41, s45, %d" % (i*4096))
            A("s_add_u32 s40, s41, %d" % L_KVW)
            A("s_mov_b32 m0, s40")
            A("s_add_u32 s41, s41, s42")
            A("buffer_load_dwordx4 v10, s[24:27], s41 offen lds")
    dma_phase(1)
    A("v_lshrrev_b32 v14, 2, v2")
    A("v_and_b32 v15, 3, v2")
    A("v_lshl_add_u32 v14, v3, 2, v14")
    A("v_mul_u32_u24 v%d, 40, v14" % (T+8))
    A("v_lshl_add_u32 v%d, v15, 3, v%d" % (T+8, T+8))
    A("v_add_u32 v%d, %d, v%d" % (T+8, L_KVW, T+8))
    A("v_mul_u32_u24 v14, 160, v14")
    A("v_lshl_add_u32 v14, v15, 3, v14")
    A("v_add_u32 v15, 61440, v14")
    vKB = 4
    A("v_mov_b32 v4, v%d" % (T+8))
    vXA = [10, 11]
    A("v_lshrrev_b32 v%d, 1, v3" % (T+8))
    A("v_lshrrev_b32 v%d, 2, v2" % (T+9))
    A("v_xor_b32 v%d, v%d, v%d" % (T+8, T+8, T+9))
    A("v_xor_b32 v%d, 2, v%d" % (T+9, T+8))
    A("v_and_b32 v%d, 1, v3" % (T+10))
    A("v_lshlrev_b32 v%d, 3, v%d" % (T+10, T+10))
    A("v_lshl_add_u32 v%d, v2, 6, v%d" % (T+10, T+10))
    A("v_add_u32 v%d, s43, v%d" % (T+10, T+10))
    A("v_lshl_add_u32 v10, v%d, 4, v%d" % (T+8, T+10))
    A("v_lshl_add_u32 v11, v%d, 4, v%d" % (T+9, T+10))
    for i in range(4):
        A("v_mov_b32 v%d, 0x3f803f80" % (ONES+i))
    A.stamp(1)
    A("s_waitcnt vmcnt(9)")
    A("s_barrier")
    A.stamp(2)

    def reads(s):
        b = s & 1
        xo = ((s >> 2) % 3)*4096 + (s & 3)*1024
        A("ds_read_b64 %s, v%d offset:%d" % (vr(XF[b], 2), vXA[0], xo))
        A("ds_read_b64 %s, v%d offset:%d" % (vr(XF[b]+2, 2), vXA[1], xo))
        base, off = 14, ((s >> 2) % 3)*20480 + (s & 3)*5120
        for j in range(5):
            A("ds_read_b64_tr_b16 %s, v%d offset:%d" % (vr(AF[b]+4*j, 2), base, off+32*j))
            A("ds_read_b64_tr_b16 %s, v%d offset:%d" % (vr(AF[b]+4*j+2, 2), base, off+2560+32*j))
        if qkv:
            L = A.newlabel(name+"_nkr")
            A("s_cbranch_vccz %s" % L)
            for j in range(2):
                A("ds_read_b64_tr_b16 %s, v%d offset:%d" % (vr(KF[b]+4*j, 2), vKB, s*1280+32*j))
                A("ds_read_b64_tr_b16 %s, v%d offset:%d" % (vr(KF[b]+4*j+2, 2), vKB, s*1280+640+32*j))
            A.label(L)
    def mf(d, a, bb, first):
        A("v_mfma_f32_16x16x32_bf16 %s, %s, %s, %s" % (vr(d, 4), vr(a, 4), vr(bb, 4), "0" if first else vr(d, 4)))
    if qkv:
        A("s_cmp_lt_u32 s37, 2")
        A("s_cselect_b64 vcc, -1, 0")
    reads_done_kv = False
    reads(0)
    for s in range(20):
        b = s & 1
        A("s_waitcnt lgkmcnt(0)")
        p, ks = divmod(s, 4)
        if ks == 3 and p < 4:
            A("s_waitcnt vmcnt(%d)" % (7 if p <= 2 else 0))
            A("s_barrier")
        if p <= 2:
            for i in ([0, 1, 2], [3, 4], [5, 6], [7, 8])[ks]:
                dma_one(p+2, i)
        if s == 16 and not qkv:
            for j in range(5):
                A("buffer_load_dwordx2 %s, v12, s[24:27], 0 offen offset:%d" % (vr(XR+2*j, 2), 32*j))
            for j in range(5):
                A("buffer_load_dwordx2 %s, v13, s[32:35], 0 offen offset:%d" % (vr(WR+2*j, 2), 32*j))
        if s < 19:
            reads(s+1)
        for j in range(5):
            mf(ACC+4*j, AF[b]+4*j, XF[b], s == 0)
        if qkv:
            mf(SX, ONES, XF[b], s == 0)
            mf(SQ, XF[b], XF[b], s == 0)
            Lk = A.newlabel(name+"_nk"); Lc = A.newlabel(name+"_nc")
            A("s_cbranch_vccz %s" % Lk)
            for j in range(2):
                mf(ACCKV+4*j, KF[b]+4*j, XF[b], s == 0)
            A.label(Lk)
            A("s_cmp_lg_u32 s3, %d" % (s & 3))
            A("s_cbranch_scc1 %s" % Lc)
            for j in range(5):
                mf(CS+4*j, AF[b]+4*j, ONES, s < 4)
            for j in range(2):
                mf(CSKV+4*j, KF[b]+4*j, ONES, s < 4)
            A.label(Lc)
    A("s_nop 7")
    A("s_nop 3")
    A("s_waitcnt vmcnt(0)")
    if qkv and CODE_TOUCH:
        code_touch(A, "k2_kernel", "k4_kernel_exit", 20480, 1, 26, name+"_ct")
    A.stamp(3)
    if qkv:
        A("v_lshlrev_b32 v5, 4, v3")
        A("v_add_u32 v5, s43, v5")
        for j in range(7):
            A("ds_write_b128 v5, %s offset:%d" % (vr(CS+4*j, 4), 64*j))
        A("v_and_b32 v%d, 3, v2" % T)
        A("v_cmp_eq_u32 vcc, 1, v%d" % T)
        A("s_nop 1")
        A("v_cndmask_b32 v%d, v%d, v%d, vcc" % (SQ, SQ, SQ+1))
        A("v_cmp_eq_u32 vcc, 2, v%d" % T)
        A("s_nop 1")
        A("v_cndmask_b32 v%d, v%d, v%d, vcc" % (SQ, SQ, SQ+2))
        A("v_cmp_eq_u32 vcc, 3, v%d" % T)
        A("s_nop 1")
        A("v_cndmask_b32 v%d, v%d, v%d, vcc" % (SQ, SQ, SQ+3))
        A("v_lshrrev_b32 v%d, 2, v2" % T)
        A("v_cmp_eq_u32 vcc, v3, v%d" % T)
        A("s_nop 1")
        A("v_cndmask_b32 v%d, 0, v%d, vcc" % (SQ, SQ))
        reduce4groups(A, SQ, T, T+1)
        A("s_waitcnt lgkmcnt(0)")
        A("s_barrier")
        A("v_lshlrev_b32 v5, 4, v3")
        A("v_add_u32 v5, %d, v5" % L_XR)
        CR = T+8
        cr = lambda j: (CR+16*j) if j < 5 else (40+16*(j-5))
        for j in range(7):
            for w in range(4):
                A("ds_read_b128 %s, v5 offset:%d" % (vr(cr(j)+4*w, 4), w*12288+64*j))
        MEAN = SX; RS = SX+1; RSQ = SX+2
        A("v_mul_f32 v%d, 0x%x, v%d" % (MEAN, f32bits(1.0/640), SX))
        A("v_mul_f32 v%d, 0x%x, v%d" % (SQ, f32bits(1.0/640), SQ))
        A("v_fma_f32 v%d, -v%d, v%d, v%d" % (SQ, MEAN, MEAN, SQ))
        A("v_max_f32 v%d, 0, v%d" % (SQ, SQ))
        A("v_add_f32 v%d, 0x%x, v%d" % (SQ, f32bits(1e-5), SQ))
        A("v_rsq_f32 v%d, v%d" % (RS, SQ))
        A("s_nop 0")
        A("v_mul_f32 v%d, 0x%x, v%d" % (RSQ, f32bits(QSCALE), RS))
        A("v_mul_u32_u24 v7, 1280, v6")
        A("s_mul_i32 s39, s37, 160")
        A("v_lshl_add_u32 v8, v3, 3, s39")
        A("v_add_u32 v7, v7, v8")
        A("s_waitcnt lgkmcnt(0)")
        def normalize(j, acc, scale_reg):
            c = cr(j)
            for r in range(4):
                A("v_add_f32 v%d, v%d, v%d" % (c+r, c+r, c+4+r))
                A("v_add_f32 v%d, v%d, v%d" % (c+8+r, c+8+r, c+12+r))
            for r in range(4):
                A("v_add_f32 v%d, v%d, v%d" % (c+r, c+r, c+8+r))
            for r in range(4):
                A("v_fma_f32 v%d, -v%d, v%d, v%d" % (acc+r, MEAN, c+r, acc+r))
            for r in range(4):
                A("v_mul_f32 v%d, v%d, v%d" % (acc+r, scale_reg, acc+r))
        for j in range(5):
            normalize(j, ACC+4*j, RSQ)
            A("v_cvt_pk_bf16_f32 v%d, v%d, v%d" % (AF[0]+2*j, ACC+4*j, ACC+4*j+1))
            A("v_cvt_pk_bf16_f32 v%d, v%d, v%d" % (AF[0]+2*j+1, ACC+4*j+2, ACC+4*j+3))
            A("buffer_store_dwordx2 %s, v7, s[28:31], 0 offen offset:%d" % (vr(AF[0]+2*j, 2), 32*j))
        Lv = A.newlabel(name+"_v"); Lz = A.newlabel(name+"_z")
        A("s_cmp_ge_u32 s37, 2")
        A("s_cbranch_scc1 %s" % Lz)
        normalize(5, ACCKV, RS); normalize(6, ACCKV+4, RS)
        P4 = AF[1]
        A("v_cvt_pk_bf16_f32 v%d, v%d, v%d" % (P4, ACCKV, ACCKV+1))
        A("v_cvt_pk_bf16_f32 v%d, v%d, v%d" % (P4+1, ACCKV+2, ACCKV+3))
        A("v_cvt_pk_bf16_f32 v%d, v%d, v%d" % (P4+2, ACCKV+4, ACCKV+5))
        A("v_cvt_pk_bf16_f32 v%d, v%d, v%d" % (P4+3, ACCKV+6, ACCKV+7))
        A("v_lshrrev_b32 v8, 5, v6")
        A("v_mul_u32_u24 v8, 2560, v8")
        A("v_add_u32 v8, 0x%x, v8" % WS_KV)
        A("v_and_b32 v9, 31, v6")
        A("s_cmp_eq_u32 s37, 1")
        A("s_cbranch_scc1 %s" % Lv)
        A("v_lshrrev_b32 v10, 1, v3")
        A("v_lshl_add_u32 v10, v10, 5, v9")
        A("v_lshlrev_b32 v10, 4, v10")
        A("v_and_b32 v11, 1, v3")
        A("v_lshl_add_u32 v10, v11, 3, v10")
        A("v_add_u32 v10, v10, v8")
        A("buffer_store_dwordx2 %s, v10, s[28:31], 0 offen" % vr(P4, 2))
        A("v_lshl_add_u32 v10, v9, 3, v8")
        A("v_cmp_eq_u32 vcc, 0, v3")
        A("s_and_saveexec_b64 s[40:41], vcc")
        A("buffer_store_dwordx2 %s, v10, s[28:31], 0 offen offset:1024" % vr(P4+2, 2))
        A("s_mov_b64 exec, s[40:41]")
        A("v_mov_b32 v%d, 0" % (T))
        A("v_mov_b32 v%d, 0" % (T+1))
        A("v_dot2c_f32_bf16 v%d, v%d, v%d" % (T, P4, P4))
        A("v_dot2c_f32_bf16 v%d, v%d, v%d" % (T+1, P4+2, P4+2))
        A("v_dot2c_f32_bf16 v%d, v%d, v%d" % (T, P4+1, P4+1))
        A("v_dot2c_f32_bf16 v%d, v%d, v%d" % (T+1, P4+3, P4+3))
        A("s_nop 3")
        A("v_cndmask_b32 v%d, 0, v%d, vcc" % (T+1, T+1))
        A("v_add_f32 v%d, v%d, v%d" % (T, T, T+1))
        reduce4groups(A, T, T+2, T+3)
        for ror in (8, 4, 2, 1):
            A("s_nop 1")
            A("v_max_f32_dpp v%d, v%d, v%d row_ror:%d row_mask:0xf bank_mask:0xf" % (T, T, T, ror))
        A("s_lshl_b32 s39, s36, 2")
        A("s_add_u32 s39, s39, s3")
        A("s_lshl_b32 s39, s39, 2")
        A("s_add_u32 s39, s39, 0x%x" % WS_KN)
        A("v_mov_b32 v10, s39")
        A("buffer_store_dword v%d, v10, s[28:31], 0 offen" % T)
        A("s_branch %s" % L_end)
        A.label(Lv)
        A("v_lshrrev_b32 v10, 4, v9")
        A("v_mul_u32_u24 v10, 640, v10")
        A("v_bfe_u32 v11, v9, 2, 1")
        A("v_mul_u32_u24 v11, 320, v11")
        A("v_add3_u32 v10, v10, v11, v8")
        A("v_and_b32 v11, 3, v9")
        A("v_lshl_add_u32 v10, v11, 1, v10")
        A("v_bfe_u32 v11, v9, 3, 1")
        A("v_lshl_add_u32 v10, v11, 3, v10")
        A("v_lshl_add_u32 v10, v3, 6, v10")
        A("buffer_store_short v%d, v10, s[28:31], 0 offen offset:1280" % (P4))
        A("buffer_store_short_d16_hi v%d, v10, s[28:31], 0 offen offset:1296" % (P4))
        A("buffer_store_short v%d, v10, s[28:31], 0 offen offset:1312" % (P4+1))
        A("buffer_store_short_d16_hi v%d, v10, s[28:31], 0 offen offset:1328" % (P4+1))
        A("v_cmp_eq_u32 vcc, 0, v3")
        A("s_and_saveexec_b64 s[40:41], vcc")
        A("buffer_store_short v%d, v10, s[28:31], 0 offen offset:1536" % (P4+2))
        A("buffer_store_short_d16_hi v%d, v10, s[28:31], 0 offen offset:1552" % (P4+2))
        A("buffer_store_short v%d, v10, s[28:31], 0 offen offset:1568" % (P4+3))
        A("buffer_store_short_d16_hi v%d, v10, s[28:31], 0 offen offset:1584" % (P4+3))
        A("s_mov_b64 exec, s[40:41]")
        A("s_branch %s" % L_end)
        A.label(Lz)
        Lz2 = A.newlabel(name+"_z2")
        A("s_cmp_lg_u32 s2, 24")
        A("s_cbranch_scc1 %s" % Lz2)
        A("v_lshlrev_b32 v10, 4, v0")
        A("v_add_u32 v10, 0x%x, v10" % WS_Y)
        for r in range(4):
            A("v_mov_b32 v%d, 0" % (T+r))
        A("buffer_store_dwordx4 %s, v10, s[28:31], 0 offen" % vr(T, 4))
        srd(A, 32, 14, D*2)
        A("v_mul_u32_u24 v10, 20, v1")
        A("buffer_load_dwordx4 %s, v10, s[32:35], 0 offen" % vr(T+4, 4))
        A("buffer_load_dword v%d, v10, s[32:35], 0 offen offset:16" % (T+8))
        A("v_mov_b32 v%d, 0" % (T+9))
        A("s_waitcnt vmcnt(0)")
        for i in range(5):
            A("v_dot2c_f32_bf16 v%d, v%d, v%d" % (T+9, T+4+i, ONES))
        A("s_nop 3")
        wave_sum(A, T+9, T+10, T+11)
        A("v_mov_b32 v10, 0x%x" % WS_SEL)
        A("buffer_store_dword v%d, v10, s[28:31], 0 offen" % (T+9))
        A("s_branch %s" % L_end)
        A.label(Lz2)
        A("s_cmp_lg_u32 s37, 2")
        A("s_cbranch_scc1 %s" % L_end)
        A("s_lshl_b32 s39, s36, 10")
        A("s_add_u32 s39, s39, 0x%x" % WS_ST)
        A("v_lshlrev_b32 v10, 4, v1")
        A("v_add_u32 v10, s39, v10")
        for r in range(4):
            A("v_mov_b32 v%d, 0" % (T+r))
        A("buffer_store_dwordx4 %s, v10, s[28:31], 0 offen" % vr(T, 4))
        A("s_lshl_b32 s39, s36, 8")
        A("s_add_u32 s39, s39, 0x%x" % WS_CNT)
        A("v_mov_b32 v10, s39")
        A("buffer_store_dword v%d, v10, s[28:31], 0 offen" % T)
    else:
        ST = SX
        for i in range(4):
            A("v_mov_b32 v%d, 0" % (ST+i))
        A("v_add_u32 v7, 0x%x, v12" % WS_H)
        for j in range(5):
            a = ACC+4*j
            U = T + 16*j
            A("v_cvt_pk_bf16_f32 v%d, v%d, v%d" % (U, a, a+1))
            A("v_cvt_pk_bf16_f32 v%d, v%d, v%d" % (U+1, a+2, a+3))
            for h in range(2):
                A("v_lshlrev_b32 v%d, 16, v%d" % (U+2+2*h, U+h))
                A("v_and_b32 v%d, 0xffff0000, v%d" % (U+3+2*h, U+h))
                A("v_lshlrev_b32 v%d, 16, v%d" % (U+6+2*h, XR+2*j+h))
                A("v_and_b32 v%d, 0xffff0000, v%d" % (U+7+2*h, XR+2*j+h))
            for r in range(4):
                A("v_add_f32 v%d, v%d, v%d" % (U+2+r, U+2+r, U+6+r))
            A("v_cvt_pk_bf16_f32 v%d, v%d, v%d" % (U+10, U+2, U+3))
            A("v_cvt_pk_bf16_f32 v%d, v%d, v%d" % (U+11, U+4, U+5))
            A("buffer_store_dwordx2 %s, v7, s[28:31], 0 offen offset:%d" % (vr(U+10, 2), 32*j))
            for h in range(2):
                A("v_dot2c_f32_bf16 v%d, v%d, v%d" % (ST, U+10+h, ONES))
                A("v_dot2c_f32_bf16 v%d, v%d, v%d" % (ST+1, U+10+h, U+10+h))
                A("v_dot2c_f32_bf16 v%d, v%d, v%d" % (ST+2, U+10+h, WR+2*j+h))
        A("s_nop 3")
        reduce4groups(A, ST, AF[0], AF[0]+1)
        reduce4groups(A, ST+1, AF[0], AF[0]+1)
        reduce4groups(A, ST+2, AF[0], AF[0]+1)
        for gi in (1, 2, 3):
            A("v_cmp_eq_u32 vcc, %d, v3" % gi)
            A("s_nop 1")
            A("v_cndmask_b32 v%d, v%d, v%d, vcc" % (ST, ST, ST+gi))
        A("v_lshlrev_b32 v8, 4, v6")
        A("v_lshl_add_u32 v8, v3, 2, v8")
        A("v_add_u32 v8, 0x%x, v8" % WS_ST)
        A("buffer_atomic_add_f32 v%d, v8, s[28:31], 0 offen" % ST)
    A.label(L_end)
    A.stamp(4)
    A.stamp(5)
    A.rstamp(7)
    A.dump_stamps(28, WS_DBG + dbgoff)
    A.label(name + "_exit")
    A("s_endpgm")
    return kernel_header(name) + A.text() + kernel_desc(name, 256, 102 if stamps else 56)
```

```python
import sys
from common import *
import k_gemm, k_attn, k_tail, k_gemm2, k_tail2, k_tail3, k_attn2, k_tail4
HDR = open("sequential_preLN__grouped_kv_mqa__moe_arch_mod__prompt.s.ref").read().split("; Override launch")[0]
def build(parts, out):
    launches = []; bodies = []
    for p in parts:
        launches.append("; @launch kernel=%s grid=(%d,1,1) block=(%d,1,1) lds=%d" % (p[0], p[1], p[2], p[3]))
        bodies.append(p[4])
    txt = HDR + "\n".join(launches) + "\n" + '.amdgcn_target "amdgcn-amd-amdhsa--gfx950"\n' + "\n".join(bodies)
    open(out, "w").write(txt)
FUSE23 = False
def parts(n, force_slow=False, stamps=False):
    ps = [("k1_kernel", 256, 256, k_gemm2.LDS_GEMM2, k_gemm2.gen_gemm2('qkv', "k1_kernel", stamps, 0))]
    if n >= 2 and FUSE23: ps.append(("k2_kernel", 256, 512, k_attn.LDS_ATTN, k_attn2.gen_attn2("k2_kernel", force_slow, stamps, 0x80000)))
    if n >= 2 and not FUSE23: ps.append(("k2_kernel", 256, 512, k_attn.LDS_ATTN, k_attn.gen_attn("k2_kernel", force_slow, stamps, 0x80000)))
    if n >= 3 and not FUSE23: ps.append(("k3_kernel", 256, 256, k_gemm2.LDS_GEMM2, k_gemm2.gen_gemm2('oproj', "k3_kernel", stamps, 0x40000)))
    if n >= 4: ps.append(("k4_kernel", k_tail3.NR+k_tail3.NF, 512, k_tail3.LDS_TAIL, k_tail3.gen_k4f("k4_kernel", stamps, 0xc0000)))
    return ps
if __name__ == "__main__":
    build(parts(5), "k5.s")
    build(parts(5, stamps=True), "k5st.s")
    build(parts(5, force_slow=True), "k5slow.s")
    build(parts(5), "sequential_preLN__grouped_kv_mqa__moe_arch_mod__prompt.s")
```

```python
from common import *

LDS_ATTN = 163840
VARIANT = 0
THR2 = 2200.0

def wave_max(A, v, t0, t1):
    for ror in (8, 4, 2, 1):
        A("s_nop 1")
        A("v_max_f32_dpp v%d, v%d, v%d row_ror:%d row_mask:0xf bank_mask:0xf" % (v, v, v, ror))
    for sw in ("v_permlane16_swap_b32", "v_permlane32_swap_b32"):
        A("v_mov_b32 v%d, v%d" % (t0, v))
        A("v_mov_b32 v%d, v%d" % (t1, v))
        A("s_nop 1")
        A("%s v%d, v%d" % (sw, t0, t1))
        A("s_nop 1")
        A("v_max_f32 v%d, v%d, v%d" % (v, t0, t1))

def gen_attn(name, force_slow=False, stamps=False, dbgoff=0):
    A = Asm()
    A.stamps = stamps
    L_end = name + "_end"
    Q1 = [16, 24]; Q2 = [20, 28]
    KL = [32, 40]; KH = [36, 44]; VF = [48, 56]
    SS = [[64, 80], [96, 112]]
    P = [128, 136]; O = [144, 160]; M = [176, 177]; T = 178
    A("s_cmp_ge_u32 s2, 256")
    A("s_cbranch_scc1 %s_exit" % name)
    A("s_load_dwordx2 s[4:5], s[0:1], %d" % KA_WS)
    A("s_load_dwordx2 s[24:25], s[0:1], %d" % KA_WO)
    A("s_load_dwordx4 s[28:31], s[0:1], %d" % KA_WG)
    A("s_load_dwordx2 s[26:27], s[0:1], %d" % KA_WD)
    A("v_and_b32 v1, 63, v0")
    A("v_and_b32 v2, 31, v0")
    A("v_lshrrev_b32 v3, 5, v1")
    A("v_lshrrev_b32 v7, 6, v0")
    A("s_nop 0")
    A("v_readfirstlane_b32 s3, v7")
    A("s_mov_b32 s14, 0x000fffff")
    A("s_mov_b32 s15, 0x000fffff")
    A("s_mov_b32 s18, 0x07060302")
    A("s_waitcnt lgkmcnt(0)")
    A.stamp(0)
    A.rstamp(6)
    srd(A, 8, 4, WS_END)
    A("s_and_b32 s12, s3, 3")
    A("s_lshr_b32 s13, s3, 2")
    A("s_lshl_b32 s19, s2, 3")
    A("s_lshl_b32 s17, s12, 1")
    A("s_add_u32 s19, s19, s17")
    A("s_mul_i32 s19, s19, 1280")
    A("v_mul_u32_u24 v8, 40, v2")
    A("v_lshl_add_u32 v8, v3, 4, v8")
    A("v_add_u32 v8, s19, v8")
    for X in range(2):
        for r in range(4):
            A("v_mov_b32 v%d, 0" % (Q2[X]+r))
    for X in range(2):
        A("buffer_load_dwordx4 %s, v8, s[8:11], 0 offen offset:%d" % (vr(Q1[X], 4), 1280*X))
    A("s_mov_b32 s20, -1")
    A("s_mov_b32 s21, 0")
    A("s_mov_b64 exec, s[20:21]")
    for X in range(2):
        A("buffer_load_dwordx2 %s, v8, s[8:11], 0 offen offset:%d" % (vr(Q2[X], 2), 1280*X+32))
    A("s_mov_b64 exec, -1")
    A("v_lshlrev_b32 v9, 3, v1")
    A("v_add_u32 v9, 0x%x, v9" % WS_KN)
    A("buffer_load_dwordx2 v[10:11], v9, s[8:11], 0 offen")
    A("buffer_load_dwordx2 v[14:15], v9, s[8:11], 0 offen offset:512")
    A("v_lshlrev_b32 v7, 4, v1")
    A("v_add_u32 v7, 0x%x, v7" % WS_KV)
    A("s_lshl_b32 s22, s3, 10")
    def dma_pair():
        A("s_mov_b32 m0, s22")
        A("s_add_u32 s23, s22, 81920")
        A("buffer_load_dwordx4 v7, s[8:11], s22 offen lds")
        A("s_mov_b32 m0, s23")
        A("s_add_u32 s22, s22, 8192")
        A("buffer_load_dwordx4 v7, s[8:11], s23 offen lds")
    for i in range(4):
        dma_pair()
    srd(A, 32, 24, D*D*2); srd(A, 36, 28, D*F*2); srd(A, 40, 30, D*F*2); srd(A, 44, 26, D*F*2)
    for X in range(2):
        for r in range(16):
            A("v_mov_b32 v%d, 0" % (O[X]+r))
        A("v_mov_b32 v%d, 0" % M[X])
    for b in range(2):
        A("v_mov_b32 v%d, 0" % (KH[b]+2))
        A("v_mov_b32 v%d, 0" % (KH[b]+3))
    A("v_cmp_eq_u32 vcc, 20, v2")
    A("v_mov_b32 v12, 0x3f803f80")
    A("s_nop 1")
    A("v_cndmask_b32 v12, 0, v12, vcc")
    for b in range(2):
        for r in range(8):
            A("v_mov_b32 v%d, v12" % (VF[b]+r))
    A("s_mul_i32 s17, s13, 81920")
    A("v_lshlrev_b32 v4, 4, v1")
    A("v_add_u32 v4, s17, v4")
    A("v_lshlrev_b32 v5, 3, v2")
    A("v_add_u32 v5, s17, v5")
    A("v_min_u32 v6, 19, v2")
    A("v_mul_u32_u24 v12, 20, v3")
    A("v_add_u32 v6, v6, v12")
    A("v_lshlrev_b32 v6, 4, v6")
    A("v_add_u32 v6, s17, v6")
    A.stamp(1)
    A("s_waitcnt vmcnt(8)")
    A("v_max_f32 v10, v10, v11")
    A("v_max_f32 v14, v14, v15")
    wave_max(A, 10, 12, 13)
    wave_max(A, 14, 12, 13)
    A("v_add_f32 v10, v10, v14")
    for X in range(2):
        A("v_mov_b32 v%d, 0" % (12+X))
    for X in range(2):
        for r in range(4):
            A("v_dot2c_f32_bf16 v%d, v%d, v%d" % (12+X, Q1[X]+r, Q1[X]+r))
        for r in range(2):
            A("v_dot2c_f32_bf16 v%d, v%d, v%d" % (12+X, Q2[X]+r, Q2[X]+r))
    A("s_nop 3")
    A("v_max_f32 v12, v12, v13")
    A("v_mov_b32 v13, v12")
    A("v_mov_b32 v14, v12")
    A("s_nop 1")
    A("v_permlane32_swap_b32 v13, v14")
    A("s_nop 1")
    A("v_add_f32 v12, v13, v14")
    A("v_mul_f32 v12, v12, v10")
    A("v_mov_b32 v13, 0x%x" % f32bits(THR2))
    A("v_cmp_nle_f32 vcc, v12, v13")
    A.stamp(2)
    A("s_waitcnt vmcnt(0)")
    A("s_barrier")
    L_slow = name + "_slow"; L_merge = name + "_merge"
    if force_slow:
        A("s_branch %s" % L_slow)
    else:
        A("s_cmp_lg_u64 vcc, 0")
        A("s_cbranch_scc1 %s" % L_slow)

    def rdK(b, off):
        A("ds_read_b128 %s, v4 offset:%d" % (vr(KL[b], 4), off))
        A("ds_read_b64 %s, v5 offset:%d" % (vr(KH[b], 2), off+1024))
    def rdV(b, off):
        A("s_mov_b64 exec, s[14:15]")
        A("ds_read_b128 %s, v6 offset:%d" % (vr(VF[b], 4), off+1280))
        A("ds_read_b128 %s, v6 offset:%d" % (vr(VF[b]+4, 4), off+1920))
        A("s_mov_b64 exec, -1")
    def qk(dst, kb, X, part):
        if part == 0:
            A("v_mfma_f32_32x32x16_bf16 %s, %s, %s, 0" % (vr(dst, 16), vr(KL[kb], 4), vr(Q1[X], 4)))
        else:
            A("v_mfma_f32_32x32x16_bf16 %s, %s, %s, %s" % (vr(dst, 16), vr(KH[kb], 4), vr(Q2[X], 4), vr(dst, 16)))
    def pv(X, vb, m):
        A("v_mfma_f32_32x32x16_bf16 %s, %s, %s, %s" % (vr(O[X], 16), vr(VF[vb]+4*m, 4), vr(P[X]+4*m, 4), vr(O[X], 16)))
    def exps(s, lo, hi):
        for r in range(lo, hi):
            A("v_exp_f32 v%d, v%d" % (s+r, s+r))
    def perm(X, s, i):
        A("v_perm_b32 v%d, v%d, v%d, s18" % (P[X]+i, s+2*i+1, s+2*i))

    if VARIANT == 2:
        Lpr = A.newlabel(name+"_pr")
        A("s_cmp_lt_u32 s3, 4")
        A("s_cbranch_scc1 %s" % Lpr)
        A("s_setprio 1")
        A.label(Lpr)
    A.stamp(3)
    rdK(0, 0)
    A("s_waitcnt lgkmcnt(0)")
    for X in range(2):
        qk(SS[0][X], 0, X, 0); qk(SS[0][X], 0, X, 1)
    rdK(1, 2560)
    rdV(0, 0)
    A("s_mov_b32 s16, 0")
    L_loop = name + "_loop"
    A.label(L_loop)
    Lw = name + "_now"
    A("s_cmp_lg_u32 s16, 2")
    A("s_cbranch_scc1 %s" % Lw)
    A("s_waitcnt vmcnt(0)")
    A("s_barrier")
    A("s_lshr_b32 s17, s2, 3")
    A("s_lshl_b32 s17, s17, 3")
    A("s_add_u32 s17, s17, s3")
    A("s_lshl_b32 s17, s17, 6")
    A("v_add_u32 v%d, s17, v1" % T)
    A("s_and_b32 s17, s2, 7")
    A("v_lshlrev_b32 v%d, 7, v%d" % (T+1, T))
    A("buffer_load_dword v%d, v%d, s[32:35], 0 offen" % (T+5, T+1))
    A("s_mov_b32 s23, 104858")
    A("v_mul_lo_u32 v%d, v%d, s23" % (T+1, T))
    A("v_lshrrev_b32 v%d, 26, v%d" % (T+1, T+1))
    A("v_mul_u32_u24 v%d, 640, v%d" % (T+2, T+1))
    A("v_sub_u32 v%d, v%d, v%d" % (T+2, T, T+2))
    A("v_lshl_add_u32 v%d, v%d, 3, s17" % (T+1, T+1))
    A("v_mul_u32_u24 v%d, 3456, v%d" % (T+2, T+2))
    A("v_lshl_add_u32 v%d, v%d, 6, v%d" % (T+2, T+1, T+2))
    A("v_cmp_gt_u32 vcc, 54, v%d" % (T+1))
    A("v_mov_b32 v%d, 0x7ffffff0" % (T+3))
    A("s_nop 0")
    A("v_cndmask_b32 v%d, v%d, v%d, vcc" % (T+2, T+3, T+2))
    A("buffer_load_dword v%d, v%d, s[36:39], 0 offen" % (T+5, T+2))
    A("buffer_load_dword v%d, v%d, s[40:43], 0 offen" % (T+5, T+2))
    A("v_mul_lo_u32 v%d, v%d, s23" % (T+1, T))
    A("v_lshrrev_b32 v%d, 25, v%d" % (T+1, T+1))
    A("v_mul_u32_u24 v%d, 320, v%d" % (T+2, T+1))
    A("v_sub_u32 v%d, v%d, v%d" % (T+2, T, T+2))
    A("v_lshl_add_u32 v%d, v%d, 3, s17" % (T+1, T+1))
    A("v_mul_u32_u24 v%d, 320, v%d" % (T+1, T+1))
    A("v_add_u32 v%d, v%d, v%d" % (T+2, T+2, T+1))
    A("v_lshlrev_b32 v%d, 7, v%d" % (T+2, T+2))
    A("buffer_load_dword v%d, v%d, s[44:47], 0 offen" % (T+5, T+2))
    A.label(Lw)
    for u in range(4):
        b = u & 1
        sa, sb = SS[b]
        na, nb = SS[1-b]
        A("s_waitcnt lgkmcnt(0)")
        if u < 3:
            Ld = A.newlabel(name + "_nd")
            A("s_cmp_ge_u32 s16, 2")
            A("s_cbranch_scc1 %s" % Ld)
            dma_pair()
            A.label(Ld)
        if VARIANT == 0:
            rdK(b, (u+2)*2560)
            rdV(1-b, (u+1)*2560)
            qk(na, 1-b, 0, 0)
            exps(sa, 0, 4)
            qk(na, 1-b, 0, 1)
            exps(sa, 4, 8); perm(0, sa, 0); perm(0, sa, 1)
            qk(nb, 1-b, 1, 0)
            exps(sa, 8, 12); perm(0, sa, 2); perm(0, sa, 3)
            qk(nb, 1-b, 1, 1)
            exps(sa, 12, 16); perm(0, sa, 4); perm(0, sa, 5)
            exps(sb, 0, 2); perm(0, sa, 6); perm(0, sa, 7)
            pv(0, b, 0)
            exps(sb, 2, 6)
            pv(0, b, 1)
            exps(sb, 6, 10); perm(1, sb, 0); perm(1, sb, 1); perm(1, sb, 2); perm(1, sb, 3)
            exps(sb, 10, 13)
            pv(1, b, 0)
            exps(sb, 13, 16); perm(1, sb, 4); perm(1, sb, 5); perm(1, sb, 6); perm(1, sb, 7)
            if u == 3:
                A("v_add_u32 v4, 10240, v4")
                A("v_add_u32 v5, 10240, v5")
                A("v_add_u32 v6, 10240, v6")
                A("s_add_u32 s16, s16, 1")
                A("s_cmp_lt_u32 s16, 8")
            else:
                A("s_nop 1")
            pv(1, b, 1)
        else:
            qk(na, 1-b, 0, 0)
            exps(sa, 0, 4)
            rdK(b, (u+2)*2560)
            qk(na, 1-b, 0, 1)
            exps(sa, 4, 8); perm(0, sa, 0); perm(0, sa, 1)
            qk(nb, 1-b, 1, 0)
            exps(sa, 8, 12); perm(0, sa, 2); perm(0, sa, 3)
            qk(nb, 1-b, 1, 1)
            exps(sa, 12, 16); perm(0, sa, 4); perm(0, sa, 5)
            pv(0, b, 0)
            exps(sb, 0, 4); perm(0, sa, 6); perm(0, sa, 7)
            rdV(1-b, (u+1)*2560)
            exps(sb, 4, 6)
            pv(0, b, 1)
            exps(sb, 6, 10); perm(1, sb, 0); perm(1, sb, 1); perm(1, sb, 2); perm(1, sb, 3)
            exps(sb, 10, 12)
            pv(1, b, 0)
            exps(sb, 12, 16); perm(1, sb, 4); perm(1, sb, 5); perm(1, sb, 6); perm(1, sb, 7)
            if u == 3:
                A("v_add_u32 v4, 10240, v4")
                A("v_add_u32 v5, 10240, v5")
                A("v_add_u32 v6, 10240, v6")
                A("s_add_u32 s16, s16, 1")
                A("s_cmp_lt_u32 s16, 8")
            else:
                A("s_nop 1")
            pv(1, b, 1)
    A("s_cbranch_scc1 %s" % L_loop)
    A("s_branch %s" % L_merge)

    A.label(L_slow)
    for i in range(6):
        dma_pair()
    A("s_waitcnt vmcnt(0)")
    A("s_barrier")
    for X in range(2):
        A("v_mov_b32 v%d, 0x%x" % (M[X], f32bits(-3.0e38)))
    A("s_mov_b32 s16, 0")
    L_sl = name + "_sloop"
    A.label(L_sl)
    rdK(0, 0)
    rdV(0, 0)
    A("s_waitcnt lgkmcnt(0)")
    for X in range(2):
        qk(SS[0][X], 0, X, 0); qk(SS[0][X], 0, X, 1)
    A("s_nop 7"); A("s_nop 7")
    for X in range(2):
        s = SS[0][X]
        A("v_max3_f32 v%d, v%d, v%d, v%d" % (T, s, s+1, s+2))
        for r in range(3, 15, 2):
            A("v_max3_f32 v%d, v%d, v%d, v%d" % (T, T, s+r, s+r+1))
        A("v_max_f32 v%d, v%d, v%d" % (T, T, s+15))
        A("v_mov_b32 v%d, v%d" % (T+1, T))
        A("v_mov_b32 v%d, v%d" % (T+2, T))
        A("s_nop 1")
        A("v_permlane32_swap_b32 v%d, v%d" % (T+1, T+2))
        A("s_nop 1")
        A("v_max3_f32 v%d, v%d, v%d, v%d" % (T, T+1, T+2, M[X]))
        A("v_sub_f32 v%d, v%d, v%d" % (T+1, M[X], T))
        A("v_exp_f32 v%d, v%d" % (T+1, T+1))
        A("v_mov_b32 v%d, v%d" % (M[X], T))
        for r in range(16):
            A("v_mul_f32 v%d, v%d, v%d" % (O[X]+r, T+1, O[X]+r))
        for r in range(16):
            A("v_sub_f32 v%d, v%d, v%d" % (s+r, s+r, T))
        exps(s, 0, 16)
        A("s_nop 0")
        for i in range(8):
            perm(X, s, i)
        A("s_nop 1")
        pv(X, 0, 0); pv(X, 0, 1)
    A("s_nop 7"); A("s_nop 7")
    A("v_add_u32 v4, 2560, v4")
    A("v_add_u32 v5, 2560, v5")
    A("v_add_u32 v6, 2560, v6")
    A("s_add_u32 s16, s16, 1")
    A("s_cmp_lt_u32 s16, 32")
    A("s_cbranch_scc1 %s" % L_sl)

    A.label(L_merge)
    A("s_nop 7"); A("s_nop 7")
    A("s_waitcnt vmcnt(0) lgkmcnt(0)")
    A.stamp(4)
    A("s_barrier")
    A("s_lshl_b32 s17, s3, 12")
    A("v_lshlrev_b32 v4, 4, v1")
    A("v_add_u32 v5, s17, v4")
    A("s_xor_b32 s17, s3, 4")
    A("s_lshl_b32 s17, s17, 12")
    A("v_add_u32 v6, s17, v4")
    A("v_lshlrev_b32 v7, 2, v1")
    A("v_add_u32 v8, s17, v7")
    A("s_lshl_b32 s17, s3, 12")
    A("v_add_u32 v7, s17, v7")
    L_k1 = name + "_mk1"
    A("s_cmp_eq_u32 s13, 1")
    A("s_cbranch_scc1 %s" % L_k1)
    for keep in range(2):
        send = 1-keep
        if keep == 1:
            A.label(L_k1)
        for q in range(3):
            A("ds_write_b128 v5, %s offset:%d" % (vr(O[send]+4*q, 4), 1024*q))
        A("ds_write_b32 v7, v%d offset:3072" % M[send])
        A("s_waitcnt lgkmcnt(0)")
        A("s_barrier")
        for q in range(3):
            A("ds_read_b128 %s, v6 offset:%d" % (vr(O[send]+4*q, 4), 1024*q))
        A("ds_read_b32 v%d, v8 offset:3072" % M[send])
        A("s_waitcnt lgkmcnt(0)")
        A("v_max_f32 v%d, v%d, v%d" % (T, M[keep], M[send]))
        A("v_sub_f32 v%d, v%d, v%d" % (T+1, M[keep], T))
        A("v_sub_f32 v%d, v%d, v%d" % (T+2, M[send], T))
        A("v_exp_f32 v%d, v%d" % (T+1, T+1))
        A("v_exp_f32 v%d, v%d" % (T+2, T+2))
        A("s_nop 0")
        for r in range(12):
            A("v_mul_f32 v%d, v%d, v%d" % (O[keep]+r, T+1, O[keep]+r))
        for r in range(12):
            A("v_fma_f32 v%d, v%d, v%d, v%d" % (O[keep]+r, T+2, O[send]+r, O[keep]+r))
        A("v_mov_b32 v%d, v%d" % (T+1, O[keep]+8))
        A("v_mov_b32 v%d, v%d" % (T+2, O[keep]+8))
        A("s_nop 1")
        A("v_permlane32_swap_b32 v%d, v%d" % (T+1, T+2))
        A("s_nop 1")
        A("v_rcp_f32 v%d, v%d" % (T+2, T+2))
        A("s_nop 0")
        for r in range(12):
            A("v_mul_f32 v%d, v%d, v%d" % (O[keep]+r, T+2, O[keep]+r))
        for i in range(6):
            A("v_cvt_pk_bf16_f32 v%d, v%d, v%d" % (T+4+i, O[keep]+2*i, O[keep]+2*i+1))
        A("v_mul_u32_u24 v9, 40, v2")
        A("v_lshl_add_u32 v9, v3, 3, v9")
        A("v_add_u32 v9, s19, v9")
        A("v_add_u32 v9, 0x%x, v9" % (WS_O + 1280*keep))
        A("buffer_store_dwordx2 %s, v9, s[8:11], 0 offen" % vr(T+4, 2))
        A("buffer_store_dwordx2 %s, v9, s[8:11], 0 offen offset:16" % vr(T+6, 2))
        A("s_mov_b64 exec, s[20:21]")
        A("buffer_store_dwordx2 %s, v9, s[8:11], 0 offen offset:32" % vr(T+8, 2))
        A("s_mov_b64 exec, -1")
        if keep == 0:
            A("s_branch %s" % L_end)
    A.label(L_end)
    A.stamp(5)
    A.rstamp(7)
    A.dump_stamps(8, WS_DBG + dbgoff)
    A.label(name + "_exit")
    A("s_endpgm")
    return kernel_header(name) + A.text() + kernel_desc(name, 256 if stamps else 192, 102 if stamps else 56)
```

```python
from common import *
from k_tail import wave_sum

L_W = 0
L_XR = 61440
L_KVW = 110592
LDS_GEMM2 = 139264
CODE_TOUCH = True
L2_TOUCH = False
QSCALE = (20.0 ** -0.5) * math.log2(math.e)

def gen_gemm2(mode, name, stamps=False, dbgoff=0):
    A = Asm(); A.stamps = stamps
    qkv = (mode == 'qkv')
    L_end = name + "_end"
    AF = [16, 36]
    KF = [56, 64]
    XF = [72, 76]
    ACC = 80
    ACCKV = 100
    CS = 108
    CSKV = 128
    SX = 136; SQ = 140; ONES = 144
    XR = 148; WR = 158
    T = 168
    A("s_cmp_ge_u32 s2, 256")
    A("s_cbranch_scc1 %s_exit" % name)
    if qkv:
        A("s_load_dwordx2 s[4:5], s[0:1], %d" % KA_X)
        A("s_load_dwordx2 s[6:7], s[0:1], %d" % KA_WQ)
        A("s_load_dwordx2 s[8:9], s[0:1], %d" % KA_WK)
        A("s_load_dwordx2 s[10:11], s[0:1], %d" % KA_WV)
        A("s_load_dwordx2 s[14:15], s[0:1], %d" % KA_WR)
    else:
        A("s_load_dwordx2 s[6:7], s[0:1], %d" % KA_WO)
        A("s_load_dwordx2 s[8:9], s[0:1], %d" % KA_X)
        A("s_load_dwordx2 s[10:11], s[0:1], %d" % KA_WR)
    A("s_load_dwordx2 s[12:13], s[0:1], %d" % KA_WS)
    A("s_and_b32 s36, s2, 7")
    A("s_lshr_b32 s37, s2, 6")
    A("s_lshl_b32 s37, s37, 3")
    A("s_add_u32 s36, s36, s37")
    A("s_lshr_b32 s37, s2, 3")
    A("s_and_b32 s37, s37, 7")
    A("v_and_b32 v1, 63, v0")
    A("v_and_b32 v2, 15, v0")
    A("v_lshrrev_b32 v3, 4, v1")
    A("v_lshrrev_b32 v5, 6, v0")
    A("s_nop 0")
    A("v_readfirstlane_b32 s3, v5")
    A("s_lshl_b32 s38, s36, 6")
    A("s_lshl_b32 s39, s3, 4")
    A("s_add_u32 s38, s38, s39")
    A("v_add_u32 v6, s38, v2")
    A("v_lshrrev_b32 v7, 2, v1")
    A("v_bfe_u32 v8, v1, 4, 2")
    A("v_and_b32 v9, 3, v1")
    A("v_xor_b32 v8, v8, v9")
    A("v_add_u32 v7, s38, v7")
    A("v_mul_u32_u24 v7, 1280, v7")
    A("v_lshl_add_u32 v7, v8, 4, v7")
    if not qkv:
        A("v_add_u32 v7, 0x%x, v7" % WS_O)
    A("s_lshl_b32 s39, s3, 6")
    A("v_add_u32 v8, s39, v1")
    A("v_add_u32 v9, 256, v1")
    A("s_mul_i32 s39, s37, 160")
    for v in (8, 9):
        A("v_mul_u32_u24 v10, 0x199a, v%d" % v)
        A("v_lshrrev_b32 v10, 16, v10")
        A("v_mul_u32_u24 v11, 10, v10")
        A("v_sub_u32 v11, v%d, v11" % v)
        A("v_mul_u32_u24 v10, 1280, v10")
        A("v_lshl_add_u32 v10, v11, 4, v10")
        A("v_add_u32 v%d, s39, v10" % v)
    A("v_lshlrev_b32 v10, 4, v1")
    A("s_mul_i32 s39, s38, 1280")
    A("v_lshlrev_b32 v11, 7, v1")
    A("v_add_u32 v11, s39, v11")
    if not qkv:
        A("v_add_u32 v11, 0x%x, v11" % WS_O)
    A("s_waitcnt lgkmcnt(0)")
    A.stamp(0)
    A.rstamp(6)
    srd(A, 28, 12, WS_END)
    if qkv:
        srd(A, 16, 4, ACT_BYTES)
    else:
        srd(A, 16, 12, WS_END)
    srd(A, 20, 6, D*D*2)
    if qkv:
        A("s_cmp_lt_u32 s37, 2")
        A("s_cselect_b32 s24, s8, s10")
        A("s_cselect_b32 s25, s9, s11")
        A("s_and_b32 s25, s25, 0xffff")
        A("s_mov_b32 s26, %d" % (D*DH*2))
        A("s_mov_b32 s27, 0x00020000")
        A("s_cmp_lt_u32 s37, 4")
        A("s_cselect_b32 s42, 0, 0x100000")
    else:
        srd(A, 24, 8, ACT_BYTES)
        srd(A, 32, 10, D*2)
    A("s_mul_i32 s43, s3, 12288")
    A("s_add_u32 s43, s43, %d" % L_XR)
    A("s_lshl_b32 s45, s3, 10")
    A("s_mul_i32 s46, s3, 5120")
    A("s_mul_i32 s47, s3, 40960")
    def dma_one(p, i):
        slot = p % 3
        if i < 4:
            s = 4*p + i
            A("s_add_u32 s40, s43, %d" % (slot*4096 + i*1024))
            A("s_mov_b32 m0, s40")
            A("s_movk_i32 s41, %d" % (64*s))
            A("buffer_load_dwordx4 v7, s[16:19], s41 offen lds")
        elif i < 8:
            a = 4*p + i - 4
            A("s_add_u32 s40, s45, %d" % (slot*20480 + (i-4)*5120))
            A("s_mov_b32 m0, s40")
            A("s_mov_b32 s41, %d" % (a*40960))
            A("buffer_load_dwordx4 v8, s[20:23], s41 offen lds")
        else:
            A("s_add_u32 s40, s46, %d" % (slot*20480 + 4096))
            A("s_mov_b32 m0, s40")
            A("s_add_u32 s41, s47, %d" % (4*p*40960))
            A("buffer_load_dwordx4 v9, s[20:23], s41 offen lds")
    def dma_phase(p):
        for i in range(9):
            dma_one(p, i)
    nfirst = 0
    if not qkv:
        A("v_mul_u32_u24 v12, 1280, v6")
        A("s_mul_i32 s39, s37, 160")
        A("v_lshl_add_u32 v13, v3, 3, s39")
        A("v_add_u32 v12, v12, v13")
    dma_phase(0)
    if qkv and L2_TOUCH:
        A("s_lshr_b32 s40, s2, 3")
        A("s_lshl_b32 s40, s40, 2")
        A("s_add_u32 s40, s40, s3")
        A("s_lshl_b32 s40, s40, 7")
        A("s_mov_b32 s44, 104858")
        A("s_and_b32 s41, s2, 7")
        for i in range(2):
            A("v_add_u32 v%d, s40, v1" % (T+4))
            if i:
                A("v_add_u32 v%d, 64, v%d" % (T+4, T+4))
            A("v_lshlrev_b32 v%d, 7, v%d" % (T+5, T+4))
            A("buffer_load_dword v%d, v%d, s[20:23], 0 offen" % (T+i, T+5))
            A("v_subrev_u32 v%d, 6400, v%d" % (T+4, T+4))
            A("v_min_u32 v%d, 0x3fff, v%d" % (T+4, T+4))
            A("v_mul_lo_u32 v%d, v%d, s44" % (T+5, T+4))
            A("v_lshrrev_b32 v%d, 26, v%d" % (T+5, T+5))
            A("v_mul_u32_u24 v%d, 640, v%d" % (T+6, T+5))
            A("v_sub_u32 v%d, v%d, v%d" % (T+6, T+4, T+6))
            A("v_lshl_add_u32 v%d, v%d, 3, s41" % (T+5, T+5))
            A("v_mul_u32_u24 v%d, 640, v%d" % (T+5, T+5))
            A("v_add_u32 v%d, v%d, v%d" % (T+5, T+5, T+6))
            A("v_lshlrev_b32 v%d, 7, v%d" % (T+5, T+5))
            A("buffer_load_dword v%d, v%d, s[16:19], 0 offen" % (T+2+i, T+5))
    if qkv:
        for i in range(7):
            A("s_add_u32 s41, s45, %d" % (i*4096))
            A("s_add_u32 s40, s41, %d" % L_KVW)
            A("s_mov_b32 m0, s40")
            A("s_add_u32 s41, s41, s42")
            A("buffer_load_dwordx4 v10, s[24:27], s41 offen lds")
    dma_phase(1)
    A("v_lshrrev_b32 v14, 2, v2")
    A("v_and_b32 v15, 3, v2")
    A("v_lshl_add_u32 v14, v3, 2, v14")
    A("v_mul_u32_u24 v%d, 40, v14" % (T+8))
    A("v_lshl_add_u32 v%d, v15, 3, v%d" % (T+8, T+8))
    A("s_and_b32 s40, s37, 1")
    A("s_lshl_b32 s40, s40, 5")
    A("s_add_u32 s40, s40, %d" % L_KVW)
    A("v_add_u32 v%d, s40, v%d" % (T+8, T+8))
    A("v_mul_u32_u24 v14, 160, v14")
    A("v_lshl_add_u32 v14, v15, 3, v14")
    A("v_add_u32 v15, 61440, v14")
    vKB = 4
    A("v_mov_b32 v4, v%d" % (T+8))
    vXA = [10, 11]
    A("v_lshrrev_b32 v%d, 1, v3" % (T+8))
    A("v_lshrrev_b32 v%d, 2, v2" % (T+9))
    A("v_xor_b32 v%d, v%d, v%d" % (T+8, T+8, T+9))
    A("v_xor_b32 v%d, 2, v%d" % (T+9, T+8))
    A("v_and_b32 v%d, 1, v3" % (T+10))
    A("v_lshlrev_b32 v%d, 3, v%d" % (T+10, T+10))
    A("v_lshl_add_u32 v%d, v2, 6, v%d" % (T+10, T+10))
    A("v_add_u32 v%d, s43, v%d" % (T+10, T+10))
    A("v_lshl_add_u32 v10, v%d, 4, v%d" % (T+8, T+10))
    A("v_lshl_add_u32 v11, v%d, 4, v%d" % (T+9, T+10))
    for i in range(4):
        A("v_mov_b32 v%d, 0x3f803f80" % (ONES+i))
    A.stamp(1)
    A("s_waitcnt vmcnt(9)")
    A("s_barrier")
    A.stamp(2)

    def reads(s):
        b = s & 1
        xo = ((s >> 2) % 3)*4096 + (s & 3)*1024
        A("ds_read_b64 %s, v%d offset:%d" % (vr(XF[b], 2), vXA[0], xo))
        A("ds_read_b64 %s, v%d offset:%d" % (vr(XF[b]+2, 2), vXA[1], xo))
        base, off = 14, ((s >> 2) % 3)*20480 + (s & 3)*5120
        for j in range(5):
            A("ds_read_b64_tr_b16 %s, v%d offset:%d" % (vr(AF[b]+4*j, 2), base, off+32*j))
            A("ds_read_b64_tr_b16 %s, v%d offset:%d" % (vr(AF[b]+4*j+2, 2), base, off+2560+32*j))
        if qkv:
            L = A.newlabel(name+"_nkr")
            A("s_cbranch_vccz %s" % L)
            for j in range(1):
                A("ds_read_b64_tr_b16 %s, v%d offset:%d" % (vr(KF[b]+4*j, 2), vKB, s*1280+32*j))
                A("ds_read_b64_tr_b16 %s, v%d offset:%d" % (vr(KF[b]+4*j+2, 2), vKB, s*1280+640+32*j))
            A.label(L)
    def mf(d, a, bb, first):
        A("v_mfma_f32_16x16x32_bf16 %s, %s, %s, %s" % (vr(d, 4), vr(a, 4), vr(bb, 4), "0" if first else vr(d, 4)))
    if qkv:
        A("s_cmp_lt_u32 s37, 4")
        A("s_cselect_b64 vcc, -1, 0")
    reads_done_kv = False
    reads(0)
    for s in range(20):
        b = s & 1
        A("s_waitcnt lgkmcnt(0)")
        p, ks = divmod(s, 4)
        if ks == 3 and p < 4:
            A("s_waitcnt vmcnt(%d)" % (7 if p <= 2 else 0))
            A("s_barrier")
        if p <= 2:
            for i in ([0, 1, 2], [3, 4], [5, 6], [7, 8])[ks]:
                dma_one(p+2, i)
        if s == 16 and not qkv:
            for j in range(5):
                A("buffer_load_dwordx2 %s, v12, s[24:27], 0 offen offset:%d" % (vr(XR+2*j, 2), 32*j))
            for j in range(5):
                A("buffer_load_dwordx2 %s, v13, s[32:35], 0 offen offset:%d" % (vr(WR+2*j, 2), 32*j))
        if s < 19:
            reads(s+1)
        for j in range(5):
            mf(ACC+4*j, AF[b]+4*j, XF[b], s == 0)
        if qkv:
            mf(SX, ONES, XF[b], s == 0)
            mf(SQ, XF[b], XF[b], s == 0)
            Lk = A.newlabel(name+"_nk"); Lc = A.newlabel(name+"_nc")
            A("s_cbranch_vccz %s" % Lk)
            for j in range(1):
                mf(ACCKV+4*j, KF[b]+4*j, XF[b], s == 0)
            A.label(Lk)
            A("s_cmp_lg_u32 s3, %d" % (s & 3))
            A("s_cbranch_scc1 %s" % Lc)
            for j in range(5):
                mf(CS+4*j, AF[b]+4*j, ONES, s < 4)
            for j in range(1):
                mf(CSKV+4*j, KF[b]+4*j, ONES, s < 4)
            A.label(Lc)
    A("s_nop 7")
    A("s_nop 3")
    A("s_waitcnt vmcnt(0)")
    if qkv and CODE_TOUCH:
        code_touch(A, "k2_kernel", "k4_kernel_exit", 20480, 1, 26, name+"_ct")
    A.stamp(3)
    if qkv:
        A("v_lshlrev_b32 v5, 4, v3")
        A("v_add_u32 v5, s43, v5")
        for j in range(6):
            A("ds_write_b128 v5, %s offset:%d" % (vr(CS+4*j, 4), 64*j))
        A("v_and_b32 v%d, 3, v2" % T)
        A("v_cmp_eq_u32 vcc, 1, v%d" % T)
        A("s_nop 1")
        A("v_cndmask_b32 v%d, v%d, v%d, vcc" % (SQ, SQ, SQ+1))
        A("v_cmp_eq_u32 vcc, 2, v%d" % T)
        A("s_nop 1")
        A("v_cndmask_b32 v%d, v%d, v%d, vcc" % (SQ, SQ, SQ+2))
        A("v_cmp_eq_u32 vcc, 3, v%d" % T)
        A("s_nop 1")
        A("v_cndmask_b32 v%d, v%d, v%d, vcc" % (SQ, SQ, SQ+3))
        A("v_lshrrev_b32 v%d, 2, v2" % T)
        A("v_cmp_eq_u32 vcc, v3, v%d" % T)
        A("s_nop 1")
        A("v_cndmask_b32 v%d, 0, v%d, vcc" % (SQ, SQ))
        reduce4groups(A, SQ, T, T+1)
        A("s_waitcnt lgkmcnt(0)")
        A("s_barrier")
        A("v_lshlrev_b32 v5, 4, v3")
        A("v_add_u32 v5, %d, v5" % L_XR)
        CR = T+8
        cr = lambda j: (CR+16*j) if j < 5 else (40+16*(j-5))
        for j in range(6):
            for w in range(4):
                A("ds_read_b128 %s, v5 offset:%d" % (vr(cr(j)+4*w, 4), w*12288+64*j))
        MEAN = SX; RS = SX+1; RSQ = SX+2
        A("v_mul_f32 v%d, 0x%x, v%d" % (MEAN, f32bits(1.0/640), SX))
        A("v_mul_f32 v%d, 0x%x, v%d" % (SQ, f32bits(1.0/640), SQ))
        A("v_fma_f32 v%d, -v%d, v%d, v%d" % (SQ, MEAN, MEAN, SQ))
        A("v_max_f32 v%d, 0, v%d" % (SQ, SQ))
        A("v_add_f32 v%d, 0x%x, v%d" % (SQ, f32bits(1e-5), SQ))
        A("v_rsq_f32 v%d, v%d" % (RS, SQ))
        A("s_nop 0")
        A("v_mul_f32 v%d, 0x%x, v%d" % (RSQ, f32bits(QSCALE), RS))
        A("v_mul_u32_u24 v7, 1280, v6")
        A("s_mul_i32 s39, s37, 160")
        A("v_lshl_add_u32 v8, v3, 3, s39")
        A("v_add_u32 v7, v7, v8")
        A("s_waitcnt lgkmcnt(0)")
        def normalize(j, acc, scale_reg):
            c = cr(j)
            for r in range(4):
                A("v_add_f32 v%d, v%d, v%d" % (c+r, c+r, c+4+r))
                A("v_add_f32 v%d, v%d, v%d" % (c+8+r, c+8+r, c+12+r))
            for r in range(4):
                A("v_add_f32 v%d, v%d, v%d" % (c+r, c+r, c+8+r))
            for r in range(4):
                A("v_fma_f32 v%d, -v%d, v%d, v%d" % (acc+r, MEAN, c+r, acc+r))
            for r in range(4):
                A("v_mul_f32 v%d, v%d, v%d" % (acc+r, scale_reg, acc+r))
        for j in range(5):
            normalize(j, ACC+4*j, RSQ)
            A("v_cvt_pk_bf16_f32 v%d, v%d, v%d" % (AF[0]+2*j, ACC+4*j, ACC+4*j+1))
            A("v_cvt_pk_bf16_f32 v%d, v%d, v%d" % (AF[0]+2*j+1, ACC+4*j+2, ACC+4*j+3))
            A("buffer_store_dwordx2 %s, v7, s[28:31], 0 offen offset:%d" % (vr(AF[0]+2*j, 2), 32*j))
        Lv = A.newlabel(name+"_v"); Lz = A.newlabel(name+"_z"); Lk1 = A.newlabel(name+"_k1"); Lkn = A.newlabel(name+"_kn"); Lv1 = A.newlabel(name+"_v1")
        A("s_cmp_ge_u32 s37, 4")
        A("s_cbranch_scc1 %s" % Lz)
        normalize(5, ACCKV, RS)
        P4 = AF[1]
        A("v_cvt_pk_bf16_f32 v%d, v%d, v%d" % (P4, ACCKV, ACCKV+1))
        A("v_cvt_pk_bf16_f32 v%d, v%d, v%d" % (P4+1, ACCKV+2, ACCKV+3))
        A("v_lshrrev_b32 v8, 5, v6")
        A("v_mul_u32_u24 v8, 2560, v8")
        A("v_add_u32 v8, 0x%x, v8" % WS_KV)
        A("v_and_b32 v9, 31, v6")
        A("v_cmp_eq_u32 vcc, 0, v3")
        A("v_mov_b32 v%d, 0" % (T))
        A("v_dot2c_f32_bf16 v%d, v%d, v%d" % (T, P4, P4))
        A("v_dot2c_f32_bf16 v%d, v%d, v%d" % (T, P4+1, P4+1))
        A("s_cmp_ge_u32 s37, 2")
        A("s_cbranch_scc1 %s" % Lv)
        A("s_cmp_eq_u32 s37, 1")
        A("s_cbranch_scc1 %s" % Lk1)
        A("v_lshrrev_b32 v10, 1, v3")
        A("v_lshl_add_u32 v10, v10, 5, v9")
        A("v_lshlrev_b32 v10, 4, v10")
        A("v_and_b32 v11, 1, v3")
        A("v_lshl_add_u32 v10, v11, 3, v10")
        A("v_add_u32 v10, v10, v8")
        A("buffer_store_dwordx2 %s, v10, s[28:31], 0 offen" % vr(P4, 2))
        A("s_branch %s" % Lkn)
        A.label(Lk1)
        A("v_lshl_add_u32 v10, v9, 3, v8")
        A("v_cndmask_b32 v%d, 0, v%d, vcc" % (T, T))
        A("s_and_saveexec_b64 s[40:41], vcc")
        A("buffer_store_dwordx2 %s, v10, s[28:31], 0 offen offset:1024" % vr(P4, 2))
        A("s_mov_b64 exec, s[40:41]")
        A.label(Lkn)
        A("s_nop 3")
        reduce4groups(A, T, T+2, T+3)
        for ror in (8, 4, 2, 1):
            A("s_nop 1")
            A("v_max_f32_dpp v%d, v%d, v%d row_ror:%d row_mask:0xf bank_mask:0xf" % (T, T, T, ror))
        A("s_lshl_b32 s39, s36, 2")
        A("s_add_u32 s39, s39, s3")
        A("s_lshl_b32 s39, s39, 2")
        A("s_lshl_b32 s40, s37, 9")
        A("s_add_u32 s39, s39, s40")
        A("s_add_u32 s39, s39, 0x%x" % WS_KN)
        A("v_mov_b32 v10, s39")
        A("buffer_store_dword v%d, v10, s[28:31], 0 offen" % T)
        A("s_branch %s" % L_end)
        A.label(Lv)
        A("v_lshrrev_b32 v10, 4, v9")
        A("v_mul_u32_u24 v10, 640, v10")
        A("v_bfe_u32 v11, v9, 2, 1")
        A("v_mul_u32_u24 v11, 320, v11")
        A("v_add3_u32 v10, v10, v11, v8")
        A("v_and_b32 v11, 3, v9")
        A("v_lshl_add_u32 v10, v11, 1, v10")
        A("v_bfe_u32 v11, v9, 3, 1")
        A("v_lshl_add_u32 v10, v11, 3, v10")
        A("v_lshl_add_u32 v10, v3, 6, v10")
        A("s_cmp_eq_u32 s37, 3")
        A("s_cbranch_scc1 %s" % Lv1)
        A("buffer_store_short v%d, v10, s[28:31], 0 offen offset:1280" % (P4))
        A("buffer_store_short_d16_hi v%d, v10, s[28:31], 0 offen offset:1296" % (P4))
        A("buffer_store_short v%d, v10, s[28:31], 0 offen offset:1312" % (P4+1))
        A("buffer_store_short_d16_hi v%d, v10, s[28:31], 0 offen offset:1328" % (P4+1))
        A("s_branch %s" % L_end)
        A.label(Lv1)
        A("s_and_saveexec_b64 s[40:41], vcc")
        A("buffer_store_short v%d, v10, s[28:31], 0 offen offset:1536" % (P4))
        A("buffer_store_short_d16_hi v%d, v10, s[28:31], 0 offen offset:1552" % (P4))
        A("buffer_store_short v%d, v10, s[28:31], 0 offen offset:1568" % (P4+1))
        A("buffer_store_short_d16_hi v%d, v10, s[28:31], 0 offen offset:1584" % (P4+1))
        A("s_mov_b64 exec, s[40:41]")
        A("s_branch %s" % L_end)
        A.label(Lz)
        Lz2 = A.newlabel(name+"_z2")
        A("s_cmp_lg_u32 s2, 40")
        A("s_cbranch_scc1 %s" % Lz2)
        A("v_lshlrev_b32 v10, 4, v0")
        A("v_add_u32 v10, 0x%x, v10" % WS_Y)
        for r in range(4):
            A("v_mov_b32 v%d, 0" % (T+r))
        A("buffer_store_dwordx4 %s, v10, s[28:31], 0 offen" % vr(T, 4))
        srd(A, 32, 14, D*2)
        A("v_mul_u32_u24 v10, 20, v1")
        A("buffer_load_dwordx4 %s, v10, s[32:35], 0 offen" % vr(T+4, 4))
        A("buffer_load_dword v%d, v10, s[32:35], 0 offen offset:16" % (T+8))
        A("v_mov_b32 v%d, 0" % (T+9))
        A("s_waitcnt vmcnt(0)")
        for i in range(5):
            A("v_dot2c_f32_bf16 v%d, v%d, v%d" % (T+9, T+4+i, ONES))
        A("s_nop 3")
        wave_sum(A, T+9, T+10, T+11)
        A("v_mov_b32 v10, 0x%x" % WS_SEL)
        A("buffer_store_dword v%d, v10, s[28:31], 0 offen" % (T+9))
        A("s_branch %s" % L_end)
        A.label(Lz2)
        A("s_cmp_lg_u32 s37, 4")
        A("s_cbranch_scc1 %s" % L_end)
        A("s_lshl_b32 s39, s36, 10")
        A("s_add_u32 s39, s39, 0x%x" % WS_ST)
        A("v_lshlrev_b32 v10, 4, v1")
        A("v_add_u32 v10, s39, v10")
        for r in range(4):
            A("v_mov_b32 v%d, 0" % (T+r))
        A("buffer_store_dwordx4 %s, v10, s[28:31], 0 offen" % vr(T, 4))
        A("s_lshl_b32 s39, s36, 8")
        A("s_add_u32 s39, s39, 0x%x" % WS_CNT)
        A("v_mov_b32 v10, s39")
        A("buffer_store_dword v%d, v10, s[28:31], 0 offen" % T)
    else:
        ST = SX
        for i in range(4):
            A("v_mov_b32 v%d, 0" % (ST+i))
        A("v_add_u32 v7, 0x%x, v12" % WS_H)
        for j in range(5):
            a = ACC+4*j
            U = T + 16*j
            A("v_cvt_pk_bf16_f32 v%d, v%d, v%d" % (U, a, a+1))
            A("v_cvt_pk_bf16_f32 v%d, v%d, v%d" % (U+1, a+2, a+3))
            for h in range(2):
                A("v_lshlrev_b32 v%d, 16, v%d" % (U+2+2*h, U+h))
                A("v_and_b32 v%d, 0xffff0000, v%d" % (U+3+2*h, U+h))
                A("v_lshlrev_b32 v%d, 16, v%d" % (U+6+2*h, XR+2*j+h))
                A("v_and_b32 v%d, 0xffff0000, v%d" % (U+7+2*h, XR+2*j+h))
            for r in range(4):
                A("v_add_f32 v%d, v%d, v%d" % (U+2+r, U+2+r, U+6+r))
            A("v_cvt_pk_bf16_f32 v%d, v%d, v%d" % (U+10, U+2, U+3))
            A("v_cvt_pk_bf16_f32 v%d, v%d, v%d" % (U+11, U+4, U+5))
            A("buffer_store_dwordx2 %s, v7, s[28:31], 0 offen offset:%d" % (vr(U+10, 2), 32*j))
            for h in range(2):
                A("v_dot2c_f32_bf16 v%d, v%d, v%d" % (ST, U+10+h, ONES))
                A("v_dot2c_f32_bf16 v%d, v%d, v%d" % (ST+1, U+10+h, U+10+h))
                A("v_dot2c_f32_bf16 v%d, v%d, v%d" % (ST+2, U+10+h, WR+2*j+h))
        A("s_nop 3")
        reduce4groups(A, ST, AF[0], AF[0]+1)
        reduce4groups(A, ST+1, AF[0], AF[0]+1)
        reduce4groups(A, ST+2, AF[0], AF[0]+1)
        for gi in (1, 2, 3):
            A("v_cmp_eq_u32 vcc, %d, v3" % gi)
            A("s_nop 1")
            A("v_cndmask_b32 v%d, v%d, v%d, vcc" % (ST, ST, ST+gi))
        A("v_lshlrev_b32 v8, 4, v6")
        A("v_lshl_add_u32 v8, v3, 2, v8")
        A("v_add_u32 v8, 0x%x, v8" % WS_ST)
        A("buffer_atomic_add_f32 v%d, v8, s[28:31], 0 offen" % ST)
    A.label(L_end)
    A.stamp(4)
    A.stamp(5)
    A.rstamp(7)
    A.dump_stamps(28, WS_DBG + dbgoff)
    A.label(name + "_exit")
    A("s_endpgm")
    return kernel_header(name) + A.text() + kernel_desc(name, 256, 102 if stamps else 56)
```

```python
from common import *
from k_tail import bf16r, ln_params, wave_sum, argmax_merge, unpack8, LOG2E
NF = 54
NR = 128
LDS_TAIL = 20480

def gen_k4f(name, stamps=False, dbgoff=0):
    A = Asm(); A.stamps = stamps
    L_end = name + "_end"; L_ffn = name + "_ffn"; L_rowsld = name + "_rowsld"; L_ld_done = name + "_lddone"
    STt = 16
    WRv = 32
    HC = 40
    RS = 52
    G = 40
    Uu = 60
    WD = 80
    T = 104
    U = 56
    A("s_cmp_ge_u32 s2, %d" % (NF+NR))
    A("s_cbranch_scc1 %s_exit" % name)
    A("s_load_dwordx2 s[4:5], s[0:1], %d" % KA_WS)
    A("s_load_dwordx4 s[20:23], s[0:1], %d" % KA_OUT)
    A("s_load_dwordx4 s[24:27], s[0:1], %d" % KA_WR)
    A("s_load_dwordx4 s[28:31], s[0:1], %d" % KA_WU)
    A("v_and_b32 v1, 63, v0")
    A("v_lshrrev_b32 v2, 6, v0")
    A("v_lshlrev_b32 v3, 6, v0")
    A("v_readfirstlane_b32 s3, v2")
    A("v_add_u32 v3, 0x%x, v3" % WS_ST)
    A("v_mov_b32 v4, 0x%x" % WS_SEL)
    A("s_waitcnt lgkmcnt(0)")
    A.stamp(0)
    srd(A, 8, 4, WS_END)
    for i in range(4):
        A("buffer_load_dwordx4 %s, v3, s[8:11], 0 offen offset:%d" % (vr(STt+4*i, 4), 16*i))
    A("buffer_load_dword v11, v4, s[8:11], 0 offen")
    srd(A, 12, 20, ACT_BYTES)
    A("s_cmp_ge_u32 s2, %d" % NF)
    A("s_cbranch_scc1 %s" % L_rowsld)
    srd(A, 44, 26, D*F*2)
    srd(A, 48, 28, D*F*2)
    srd(A, 52, 30, D*F*2)
    srd(A, 56, 22, 256)
    A("s_waitcnt vmcnt(0)")
    A("s_branch %s" % L_ld_done)
    A.label(L_rowsld)
    A("v_lshrrev_b32 v4, 5, v0")
    A("s_sub_u32 s34, s2, %d" % NF)
    A("s_lshl_b32 s34, s34, 4")
    A("v_add_u32 v4, s34, v4")
    A("v_and_b32 v5, 31, v0")
    A("v_mul_u32_u24 v6, 1280, v4")
    A("v_lshl_add_u32 v6, v5, 4, v6")
    A("v_add_u32 v7, 0x%x, v6" % WS_H)
    for i in range(3):
        A("buffer_load_dwordx4 %s, v7, s[8:11], 0 offen offset:%d" % (vr(HC+4*i, 4), 512*i))
    A("v_lshlrev_b32 v7, 4, v4")
    A("v_add_u32 v7, 0x%x, v7" % WS_ST)
    A("buffer_load_dwordx4 %s, v7, s[8:11], 0 offen" % vr(RS, 4))
    A("s_waitcnt vmcnt(4)")
    A.label(L_ld_done)
    A.stamp(1)
    A("v_lshlrev_b32 v14, 2, v0")
    A("v_sub_u32 v14, 2047, v14")
    A("s_mov_b32 s40, 0xfffff800")
    for i in range(4):
        s0 = STt+4*i
        A("v_mul_f32 v%d, 0x%x, v%d" % (T, f32bits(1.0/640), s0))
        A("v_mul_f32 v%d, 0x%x, v%d" % (T+1, f32bits(1.0/640), s0+1))
        A("v_fma_f32 v%d, -v%d, v%d, v%d" % (T+1, T, T, T+1))
        A("v_max_f32 v%d, 0, v%d" % (T+1, T+1))
        A("v_add_f32 v%d, 0x%x, v%d" % (T+1, f32bits(1e-5), T+1))
        A("v_rsq_f32 v%d, v%d" % (T+1, T+1))
        A("v_fma_f32 v%d, -v%d, v11, v%d" % (T+2, T, s0+2))
        A("v_mul_f32 v%d, v%d, v%d" % (T+2, T+2, T+1))
        A("v_ashrrev_i32 v%d, 31, v%d" % (T+3, T+2))
        A("v_or_b32 v%d, 0x80000000, v%d" % (T+3, T+3))
        A("v_xor_b32 v%d, v%d, v%d" % (T+2, T+2, T+3))
        A("v_subrev_u32 v%d, %d, v14" % (T+3, i))
        A("v_and_or_b32 v%d, v%d, s40, v%d" % (T+2, T+2, T+3))
        if i == 0:
            A("v_mov_b32 v13, v%d" % (T+2))
        else:
            A("v_max_u32 v13, v13, v%d" % (T+2))
    for ror in (8, 4, 2, 1):
        A("s_nop 1")
        A("v_max_u32_dpp v13, v13, v13 row_ror:%d row_mask:0xf bank_mask:0xf" % ror)
    for sw in ("v_permlane16_swap_b32", "v_permlane32_swap_b32"):
        A("v_mov_b32 v%d, v13" % T)
        A("v_mov_b32 v%d, v13" % (T+1))
        A("s_nop 1")
        A("%s v%d, v%d" % (sw, T, T+1))
        A("s_nop 1")
        A("v_max_u32 v13, v%d, v%d" % (T, T+1))
    A("s_lshl_b32 s35, s3, 2")
    A("v_mov_b32 v%d, s35" % T)
    A("ds_write_b32 v%d, v13" % T)
    A("s_waitcnt lgkmcnt(0)")
    A("s_barrier")
    A("v_mov_b32 v%d, 0" % T)
    A("ds_read_b128 %s, v%d" % (vr(T+4, 4), T))
    A("ds_read_b128 %s, v%d offset:16" % (vr(T+8, 4), T))
    A("s_waitcnt lgkmcnt(0)")
    A("v_max3_u32 v13, v%d, v%d, v%d" % (T+4, T+5, T+6))
    A("v_max3_u32 v13, v13, v%d, v%d" % (T+7, T+8))
    A("v_max3_u32 v13, v13, v%d, v%d" % (T+9, T+10))
    A("v_max_u32 v13, v13, v%d" % (T+11))
    A("v_and_b32 v13, 0x7ff, v13")
    A("v_sub_u32 v13, 2047, v13")
    A("s_nop 0")
    A("v_readfirstlane_b32 s36, v13")
    A.stamp(2)
    A("s_cmp_lt_u32 s2, %d" % NF)
    A("s_cbranch_scc1 %s" % L_ffn)
    A("s_waitcnt vmcnt(0)")
    ln_params(A, RS, RS+1, U, U+1, U+2)
    A("v_cmp_ne_u32 s[38:39], s36, v4")
    for i in range(3):
        hc = HC+4*i
        unpack8(A, U+4, hc)
        for e in range(8):
            A("v_sub_f32 v%d, v%d, v%d" % (U+12+e, U+4+e, U))
        for q in range(4):
            A("v_cvt_pk_bf16_f32 v%d, v%d, v%d" % (U+20+q, U+12+2*q, U+13+2*q))
        unpack8(A, U+12, U+20)
        for e in range(8):
            A("v_mul_f32 v%d, v%d, v%d" % (U+12+e, U+1, U+12+e))
        for q in range(4):
            A("v_cvt_pk_bf16_f32 v%d, v%d, v%d" % (U+20+q, U+12+2*q, U+13+2*q))
        unpack8(A, U+12, U+20)
        for e in range(8):
            A("v_add_f32 v%d, v%d, v%d" % (U+12+e, U+4+e, U+12+e))
        for q in range(4):
            A("v_cvt_pk_bf16_f32 v%d, v%d, v%d" % (U+24+4*i+q, U+12+2*q, U+13+2*q))
    A("v_cmp_gt_u32 vcc, 16, v5")
    A("s_nop 3")
    A("s_and_b64 vcc, vcc, s[38:39]")
    A("s_mov_b64 exec, s[38:39]")
    Lsk = A.newlabel(name+"_sk")
    A("s_cbranch_execz %s" % Lsk)
    A("buffer_store_dwordx4 %s, v6, s[12:15], 0 offen" % vr(U+24, 4))
    A("buffer_store_dwordx4 %s, v6, s[12:15], 0 offen offset:512" % vr(U+28, 4))
    A("s_mov_b64 exec, vcc")
    A("buffer_store_dwordx4 %s, v6, s[12:15], 0 offen offset:1024" % vr(U+32, 4))
    A.label(Lsk)
    A("s_mov_b64 exec, -1")
    A("s_branch %s" % L_end)
    A.label(L_ffn)
    XS = STt
    A("v_lshrrev_b32 v8, 2, v0")
    A("s_mul_i32 s37, s36, 1280")
    A("s_add_u32 s35, s37, 0x%x" % WS_H)
    A("v_lshlrev_b32 v%d, 1, v8" % T)
    A("v_add_u32 v%d, s35, v%d" % (T, T))
    for i in range(5):
        A("buffer_load_ushort v%d, v%d, s[8:11], 0 offen offset:%d" % (XS+i, T, 256*i))
    A("s_lshl_b32 s35, s36, 4")
    A("s_add_u32 s35, s35, 0x%x" % WS_ST)
    A("v_mov_b32 v%d, s35" % (T+1))
    A("buffer_load_dwordx4 v[24:27], v%d, s[8:11], 0 offen" % (T+1))
    A("v_lshrrev_b32 v8, 2, v0")
    A("v_and_b32 v9, 3, v0")
    A("v_mul_u32_u24 v10, 3456, v8")
    A("v_lshl_add_u32 v10, v9, 4, v10")
    A("s_lshl_b32 s35, s2, 6")
    A("v_add_u32 v10, s35, v10")
    for i in range(5):
        A("s_mov_b32 s35, %d" % (i*128*3456))
        A("buffer_load_dwordx4 %s, v10, s[44:47], s35 offen" % vr(G+4*i, 4))
        A("buffer_load_dwordx4 %s, v10, s[48:51], s35 offen" % vr(Uu+4*i, 4))
    A("v_min_u32 v4, 479, v0")
    A("v_mul_u32_u24 v5, 0x334, v4")
    A("v_lshrrev_b32 v5, 16, v5")
    A("v_mul_u32_u24 v6, 80, v5")
    A("v_sub_u32 v6, v4, v6")
    A("s_lshl_b32 s35, s2, 5")
    A("v_add_u32 v7, s35, v5")
    A("v_mul_u32_u24 v7, 1280, v7")
    A("v_lshl_add_u32 v7, v6, 4, v7")
    for i in range(6):
        A("s_mov_b32 s35, %d" % (i*6*1280))
        A("buffer_load_dwordx4 %s, v7, s[52:55], s35 offen" % vr(WD+4*i, 4))
    AC = 112
    for e in range(16):
        A("v_mov_b32 v%d, 0" % (AC+e))
    A("s_waitcnt vmcnt(16)")
    A.stamp(5)
    MB = 28; RI = 29
    ln_params(A, 24, 25, MB, RI, T+2)
    A("v_fma_f32 v13, -v%d, v11, v26" % MB)
    A("v_mul_f32 v13, v13, v%d" % RI)
    for i in range(5):
        x = XS+i
        A("v_lshlrev_b32 v%d, 16, v%d" % (x, x))
        A("v_sub_f32 v%d, v%d, v%d" % (x, x, MB))
        bf16r(A, x, x)
        A("v_mul_f32 v%d, v%d, v%d" % (x, RI, x))
        bf16r(A, x, x)
        A("s_waitcnt vmcnt(%d)" % (16-2*(i+1)))
        unpack8(A, T, G+4*i)
        for e in range(8):
            A("v_fmac_f32 v%d, v%d, v%d" % (AC+e, x, T+e))
        unpack8(A, T, Uu+4*i)
        for e in range(8):
            A("v_fmac_f32 v%d, v%d, v%d" % (AC+8+e, x, T+e))
    A("s_nop 1")
    for i in range(8):
        A("v_permlane32_swap_b32 v%d, v%d" % (AC+i, AC+8+i))
    A("s_nop 1")
    for i in range(8):
        A("v_add_f32 v%d, v%d, v%d" % (AC+i, AC+i, AC+8+i))
    A("s_nop 1")
    for i in range(4):
        A("v_permlane16_swap_b32 v%d, v%d" % (AC+i, AC+4+i))
    A("s_nop 1")
    for i in range(4):
        A("v_add_f32 v%d, v%d, v%d" % (AC+i, AC+i, AC+4+i))
    for ror in (8, 4):
        A("s_nop 1")
        for i in range(4):
            A("v_add_f32_dpp v%d, v%d, v%d row_ror:%d row_mask:0xf bank_mask:0xf" % (AC+4+i, AC+i, AC+i, ror))
        for i in range(4):
            A("v_mov_b32 v%d, v%d" % (AC+i, AC+4+i))
    A("v_lshrrev_b32 v%d, 5, v1" % T)
    A("v_lshlrev_b32 v%d, 7, v%d" % (T, T))
    A("v_bfe_u32 v%d, v1, 4, 1" % (T+1))
    A("v_lshl_add_u32 v%d, v%d, 4, v%d" % (T, T+1, T))
    A("v_lshl_add_u32 v%d, v9, 5, v%d" % (T, T))
    A("s_lshl_b32 s35, s3, 8")
    A("v_add_u32 v%d, s35, v%d" % (T, T))
    A("ds_write_b128 v%d, %s offset:64" % (T, vr(AC, 4)))
    A("s_waitcnt lgkmcnt(0)")
    A("s_barrier")
    A("v_lshlrev_b32 v%d, 2, v1" % T)
    for w in range(8):
        A("ds_read_b32 v%d, v%d offset:%d" % (AC+w, T, 64+256*w))
    A("s_waitcnt lgkmcnt(0)")
    for st in (1, 2, 4):
        for w in range(0, 8, 2*st):
            A("v_add_f32 v%d, v%d, v%d" % (AC+w, AC+w, AC+w+st))
    bf16r(A, AC, AC)
    A("v_mov_b32 v%d, v%d" % (AC+1, AC))
    A("s_nop 1")
    A("v_permlane32_swap_b32 v%d, v%d" % (AC, AC+1))
    A("s_nop 1")
    g = AC; u = AC+1
    A("v_mul_f32 v%d, 0x%x, v%d" % (g+2, f32bits(-LOG2E), g))
    A("v_exp_f32 v%d, v%d" % (g+2, g+2))
    A("s_nop 0")
    A("v_add_f32 v%d, 1.0, v%d" % (g+2, g+2))
    A("v_rcp_f32 v%d, v%d" % (g+2, g+2))
    A("s_nop 0")
    A("v_mul_f32 v%d, v%d, v%d" % (g, g, g+2))
    bf16r(A, g, g)
    A("v_mul_f32 v%d, v%d, v%d" % (g, g, u))
    bf16r(A, g, g)
    A("v_lshlrev_b32 v%d, 2, v5" % T)
    for i in range(6):
        A("v_add_u32 v%d, %d, v%d" % (T+1+i, 24*i, T))
    for i in range(6):
        A("ds_bpermute_b32 v%d, v%d, v%d" % (XS+i, T+1+i, g))
    A("v_cmp_gt_u32 vcc, 2, v5")
    for e in range(8):
        A("v_mov_b32 v%d, 0" % (AC+4+e))
    A("s_waitcnt vmcnt(0) lgkmcnt(0)")
    A("v_cndmask_b32 v%d, 0, v%d, vcc" % (XS+5, XS+5))
    AY = AC+4
    for i in range(6):
        unpack8(A, T, WD+4*i)
        for e in range(8):
            A("v_fmac_f32 v%d, v%d, v%d" % (AY+e, XS+i, T+e))
    A("v_mul_u32_u24 v%d, 2560, v5" % T)
    A("v_lshl_add_u32 v%d, v6, 5, v%d" % (T, T))
    A("ds_write_b128 v%d, %s offset:4096" % (T, vr(AY, 4)))
    A("ds_write_b128 v%d, %s offset:4112" % (T, vr(AY+4, 4)))
    A("s_waitcnt lgkmcnt(0)")
    A("s_barrier")
    A("v_lshlrev_b32 v%d, 2, v0" % T)
    for rg in range(6):
        A("ds_read_b32 v%d, v%d offset:%d" % (AC+rg, T, 4096+rg*2560))
    A("s_cmp_ge_u32 s3, 2")
    Lna = A.newlabel(name+"_na")
    A("s_cbranch_scc1 %s" % Lna)
    for rg in range(6):
        A("ds_read_b32 v%d, v%d offset:%d" % (AC+8+rg, T, 4096+rg*2560+2048))
    A("s_waitcnt lgkmcnt(0)")
    b = AC+8
    A("v_add_f32 v%d, v%d, v%d" % (b, b, b+1)); A("v_add_f32 v%d, v%d, v%d" % (b+2, b+2, b+3)); A("v_add_f32 v%d, v%d, v%d" % (b+4, b+4, b+5))
    A("v_add_f32 v%d, v%d, v%d" % (b, b, b+2)); A("v_add_f32 v%d, v%d, v%d" % (b, b, b+4))
    A("v_add_u32 v%d, 0x%x, v%d" % (T+1, WS_Y, T))
    A("buffer_atomic_add_f32 v%d, v%d, s[8:11], 0 offen offset:2048" % (b, T+1))
    A.label(Lna)
    A("s_waitcnt lgkmcnt(0)")
    b = AC
    A("v_add_f32 v%d, v%d, v%d" % (b, b, b+1)); A("v_add_f32 v%d, v%d, v%d" % (b+2, b+2, b+3)); A("v_add_f32 v%d, v%d, v%d" % (b+4, b+4, b+5))
    A("v_add_f32 v%d, v%d, v%d" % (b, b, b+2)); A("v_add_f32 v%d, v%d, v%d" % (b, b, b+4))
    A("v_add_u32 v%d, 0x%x, v%d" % (T+1, WS_Y, T))
    A("buffer_atomic_add_f32 v%d, v%d, s[8:11], 0 offen" % (b, T+1))
    A.stamp(3)
    A("s_waitcnt vmcnt(0)")
    A.stamp(6)
    A("s_barrier")
    A("s_cmp_lg_u32 s3, 0")
    A("s_cbranch_scc1 %s" % L_end)
    A("v_mov_b32 v%d, 1" % T)
    A("v_mov_b32 v%d, 0" % (T+1))
    A("s_mov_b64 exec, 1")
    A("buffer_atomic_add v%d, v%d, s[56:59], 0 offen sc0 sc1" % (T, T+1))
    A("s_mov_b64 exec, -1")
    A("v_lshlrev_b32 v%d, 2, v1" % (T+4))
    A("v_add_u32 v%d, s37, v%d" % (T+4, T+4))
    A("v_add_u32 v%d, 0x%x, v%d" % (T+5, WS_H, T+4))
    for i in range(5):
        A("buffer_load_dword v%d, v%d, s[8:11], 0 offen offset:%d" % (60+i, T+5, 256*i))
    bf16r(A, 13, 13)
    A("v_mul_f32 v13, 0x%x, v13" % f32bits(-LOG2E))
    A("v_exp_f32 v13, v13")
    A("s_nop 0")
    A("v_add_f32 v13, 1.0, v13")
    A("v_rcp_f32 v13, v13")
    A("s_nop 0")
    bf16r(A, 13, 13)
    A("s_waitcnt vmcnt(5)")
    A.stamp(7)
    A("v_readfirstlane_b32 s35, v%d" % T)
    A("s_nop 3")
    A("s_cmp_lg_u32 s35, %d" % (NF-1))
    A("s_cbranch_scc1 %s" % L_end)
    A("buffer_inv sc1")
    A("s_waitcnt vmcnt(0)")
    A("v_lshlrev_b32 v%d, 3, v1" % T)
    A("v_add_u32 v%d, 0x%x, v%d" % (T, WS_Y, T))
    for i in range(5):
        A("buffer_load_dwordx2 %s, v%d, s[8:11], 0 offen offset:%d sc0 sc1" % (vr(40+2*i, 2), T, 512*i))
    A("s_waitcnt vmcnt(0)")
    for i in range(5):
        A("v_lshlrev_b32 v%d, 16, v%d" % (T+6, 60+i))
        A("v_and_b32 v%d, 0xffff0000, v%d" % (T+7, 60+i))
        for e in range(2):
            y = 40+2*i+e; h = T+6+e; t = T+8
            bf16r(A, y, y)
            A("v_mul_f32 v%d, v13, v%d" % (y, y))
            bf16r(A, y, y)
            A("v_sub_f32 v%d, v%d, v%d" % (t, h, MB))
            bf16r(A, t, t)
            A("v_mul_f32 v%d, v%d, v%d" % (t, RI, t))
            bf16r(A, t, t)
            A("v_add_f32 v%d, v%d, v%d" % (t, t, y))
            bf16r(A, t, t)
            A("v_add_f32 v%d, v%d, v%d" % (y, h, t))
        A("v_cvt_pk_bf16_f32 v%d, v%d, v%d" % (70+i, 40+2*i, 41+2*i))
        A("buffer_store_dword v%d, v%d, s[12:15], 0 offen offset:%d" % (70+i, T+4, 256*i))
    A.label(L_end)
    A.stamp(4)
    A.dump_stamps(8, WS_DBG + dbgoff)
    A.label(name + "_exit")
    A("s_endpgm")
    return kernel_header(name) + A.text() + kernel_desc(name, 256 if stamps else 128, 102 if stamps else 64)
```

```python
from common import *
from k_tail import bf16r, ln_params, unpack8, LOG2E
NF = 54
NR = 128
LG = 0; LU = 40960; LD = 81920; LM = 122880; LRED = 123136; LY = 125184
LDS_TAIL = 140800

def gen_k4f(name, stamps=False, dbgoff=0):
    A = Asm(); A.stamps = stamps
    L_end = name + "_end"; L_ffn = name + "_ffn"
    STt = 16
    HC = 48
    RS = 60
    T = 104
    U = 64
    A("s_cmp_ge_u32 s2, %d" % (NF+NR))
    A("s_cbranch_scc1 %s_exit" % name)
    A("s_load_dwordx2 s[4:5], s[0:1], %d" % KA_WS)
    A("s_load_dwordx4 s[20:23], s[0:1], %d" % KA_OUT)
    A("s_load_dwordx2 s[26:27], s[0:1], %d" % KA_WG)
    A("s_load_dwordx4 s[28:31], s[0:1], %d" % KA_WU)
    A("v_and_b32 v1, 63, v0")
    A("v_lshrrev_b32 v2, 6, v0")
    A("v_lshlrev_b32 v3, 7, v0")
    A("v_readfirstlane_b32 s3, v2")
    A("v_add_u32 v3, 0x%x, v3" % WS_ST)
    A("v_mov_b32 v4, 0x%x" % WS_SEL)
    A("s_waitcnt lgkmcnt(0)")
    A.stamp(0)
    srd(A, 8, 4, WS_END)
    srd(A, 12, 20, ACT_BYTES)
    Lhi = A.newlabel(name+"_hi"); Lj = A.newlabel(name+"_j"); Lrowld = A.newlabel(name+"_rowld"); Lnorow = A.newlabel(name+"_norow")
    A("s_cmp_lt_u32 s2, %d" % NF)
    A("s_cbranch_scc1 %s" % Lnorow)
    A("v_lshrrev_b32 v5, 5, v0")
    A("s_sub_u32 s34, s2, %d" % NF)
    A("s_lshl_b32 s34, s34, 4")
    A("v_add_u32 v5, s34, v5")
    A("v_and_b32 v6, 31, v0")
    A("v_mul_u32_u24 v7, 1280, v5")
    A("v_lshl_add_u32 v7, v6, 4, v7")
    A("v_add_u32 v8, 0x%x, v7" % WS_H)
    for i in range(3):
        A("buffer_load_dwordx4 %s, v8, s[8:11], 0 offen offset:%d" % (vr(HC+4*i, 4), 512*i))
    A("v_lshlrev_b32 v8, 4, v5")
    A("v_add_u32 v8, 0x%x, v8" % WS_ST)
    A("buffer_load_dwordx4 %s, v8, s[8:11], 0 offen" % vr(RS, 4))
    A.label(Lnorow)
    A("buffer_load_dword v11, v4, s[8:11], 0 offen")
    A("s_cmp_ge_u32 s3, 4")
    A("s_cbranch_scc1 %s" % Lhi)
    for i in range(8):
        A("buffer_load_dwordx4 %s, v3, s[8:11], 0 offen offset:%d" % (vr(STt+4*i, 4), 16*i))
    A("v_lshlrev_b32 v14, 3, v0")
    A("v_sub_u32 v14, 2047, v14")
    A("s_mov_b32 s40, 0xfffff800")
    for i in range(8):
        s0 = STt+4*i
        A("s_waitcnt vmcnt(%d)" % (7-i))
        A("v_mul_f32 v%d, 0x%x, v%d" % (T, f32bits(1.0/640), s0))
        A("v_mul_f32 v%d, 0x%x, v%d" % (T+1, f32bits(1.0/640), s0+1))
        A("v_fma_f32 v%d, -v%d, v%d, v%d" % (T+1, T, T, T+1))
        A("v_max_f32 v%d, 0, v%d" % (T+1, T+1))
        A("v_add_f32 v%d, 0x%x, v%d" % (T+1, f32bits(1e-5), T+1))
        A("v_rsq_f32 v%d, v%d" % (T+1, T+1))
        A("v_fma_f32 v%d, -v%d, v11, v%d" % (T+2, T, s0+2))
        A("v_mul_f32 v%d, v%d, v%d" % (T+2, T+2, T+1))
        A("v_ashrrev_i32 v%d, 31, v%d" % (T+3, T+2))
        A("v_or_b32 v%d, 0x80000000, v%d" % (T+3, T+3))
        A("v_xor_b32 v%d, v%d, v%d" % (T+2, T+2, T+3))
        A("v_subrev_u32 v%d, %d, v14" % (T+3, i))
        A("v_and_or_b32 v%d, v%d, s40, v%d" % (T+2, T+2, T+3))
        if i == 0:
            A("v_mov_b32 v13, v%d" % (T+2))
        else:
            A("v_max_u32 v13, v13, v%d" % (T+2))
    for ror in (8, 4, 2, 1):
        A("s_nop 1")
        A("v_max_u32_dpp v13, v13, v13 row_ror:%d row_mask:0xf bank_mask:0xf" % ror)
    for sw in ("v_permlane16_swap_b32", "v_permlane32_swap_b32"):
        A("v_mov_b32 v%d, v13" % T)
        A("v_mov_b32 v%d, v13" % (T+1))
        A("s_nop 1")
        A("%s v%d, v%d" % (sw, T, T+1))
        A("s_nop 1")
        A("v_max_u32 v13, v%d, v%d" % (T, T+1))
    A("s_lshl_b32 s35, s3, 2")
    A("s_add_u32 s35, s35, %d" % LM)
    A("v_mov_b32 v%d, s35" % T)
    A("ds_write_b32 v%d, v13" % T)
    A("s_waitcnt lgkmcnt(0)")
    A("s_branch %s" % Lj)
    A.label(Lhi)
    A("s_cmp_ge_u32 s2, %d" % NF)
    A("s_cbranch_scc1 %s" % Lj)
    srd(A, 44, 26, D*F*2)
    srd(A, 48, 28, D*F*2)
    srd(A, 52, 30, D*F*2)
    A("s_sub_u32 s34, s3, 4")
    A("v_lshrrev_b32 v8, 2, v1")
    A("v_and_b32 v9, 3, v1")
    A("v_mul_u32_u24 v8, 3456, v8")
    A("v_lshl_add_u32 v8, v9, 4, v8")
    A("s_lshl_b32 s35, s2, 6")
    A("v_add_u32 v8, s35, v8")
    A("v_lshlrev_b32 v9, 4, v1")
    A("s_mul_i32 s36, s34, %d" % (16*3456))
    A("s_lshl_b32 s37, s34, 10")
    A("s_mul_i32 s38, s2, 40960")
    A("s_add_u32 s38, s38, s37")
    for i in range(10):
        for (base, sr_) in ((LG, 44), (LU, 48)):
            A("s_add_u32 s40, s37, %d" % (base + i*4096))
            A("s_mov_b32 m0, s40")
            A("s_add_u32 s41, s36, %d" % (i*64*3456))
            A("buffer_load_dwordx4 v8, s[%d:%d], s41 offen lds" % (sr_, sr_+3))
    for i in range(10):
        A("s_add_u32 s40, s37, %d" % (LD + i*4096))
        A("s_mov_b32 m0, s40")
        A("s_add_u32 s41, s38, %d" % (i*4096))
        A("buffer_load_dwordx4 v9, s[52:55], s41 offen lds")
    A.label(Lj)
    A("s_barrier")
    A("v_mov_b32 v%d, %d" % (T, LM))
    A("ds_read_b128 %s, v%d" % (vr(T+4, 4), T))
    A("s_waitcnt lgkmcnt(0)")
    A("v_max3_u32 v13, v%d, v%d, v%d" % (T+4, T+5, T+6))
    A("v_max_u32 v13, v13, v%d" % (T+7))
    A("v_and_b32 v13, 0x7ff, v13")
    A("v_sub_u32 v13, 2047, v13")
    A("s_nop 0")
    A("v_readfirstlane_b32 s36, v13")
    A.stamp(2)
    A("s_cmp_lt_u32 s2, %d" % NF)
    A("s_cbranch_scc1 %s" % L_ffn)
    A("s_waitcnt vmcnt(0)")
    ln_params(A, RS, RS+1, U, U+1, U+2)
    A("v_cmp_ne_u32 s[38:39], s36, v5")
    for i in range(3):
        hc = HC+4*i
        unpack8(A, U+4, hc)
        for e in range(8):
            A("v_sub_f32 v%d, v%d, v%d" % (U+12+e, U+4+e, U))
        for q in range(4):
            A("v_cvt_pk_bf16_f32 v%d, v%d, v%d" % (U+20+q, U+12+2*q, U+13+2*q))
        unpack8(A, U+12, U+20)
        for e in range(8):
            A("v_mul_f32 v%d, v%d, v%d" % (U+12+e, U+1, U+12+e))
        for q in range(4):
            A("v_cvt_pk_bf16_f32 v%d, v%d, v%d" % (U+20+q, U+12+2*q, U+13+2*q))
        unpack8(A, U+12, U+20)
        for e in range(8):
            A("v_add_f32 v%d, v%d, v%d" % (U+12+e, U+4+e, U+12+e))
        for q in range(4):
            A("v_cvt_pk_bf16_f32 v%d, v%d, v%d" % (U+24+4*i+q, U+12+2*q, U+13+2*q))
    A("v_cmp_gt_u32 vcc, 16, v6")
    A("s_nop 3")
    A("s_and_b64 vcc, vcc, s[38:39]")
    A("s_mov_b64 exec, s[38:39]")
    Lsk = A.newlabel(name+"_sk")
    A("s_cbranch_execz %s" % Lsk)
    A("buffer_store_dwordx4 %s, v7, s[12:15], 0 offen" % vr(U+24, 4))
    A("buffer_store_dwordx4 %s, v7, s[12:15], 0 offen offset:512" % vr(U+28, 4))
    A("s_mov_b64 exec, vcc")
    A("buffer_store_dwordx4 %s, v7, s[12:15], 0 offen offset:1024" % vr(U+32, 4))
    A.label(Lsk)
    A("s_mov_b64 exec, -1")
    A("s_branch %s" % L_end)
    A.label(L_ffn)
    srd(A, 56, 22, 256)
    XS = 16
    G = 40; Uu = 60; WD = 80
    A("v_lshrrev_b32 v8, 2, v0")
    A("v_and_b32 v9, 3, v0")
    A("s_mul_i32 s37, s36, 1280")
    A("s_add_u32 s35, s37, 0x%x" % WS_H)
    A("v_lshlrev_b32 v%d, 1, v8" % T)
    A("v_add_u32 v%d, s35, v%d" % (T, T))
    for i in range(5):
        A("buffer_load_ushort v%d, v%d, s[8:11], 0 offen offset:%d" % (XS+i, T, 256*i))
    A("s_lshl_b32 s35, s36, 4")
    A("s_add_u32 s35, s35, 0x%x" % WS_ST)
    A("v_mov_b32 v%d, s35" % (T+1))
    A("buffer_load_dwordx4 v[24:27], v%d, s[8:11], 0 offen" % (T+1))
    A("v_min_u32 v4, 479, v0")
    A("v_mul_u32_u24 v5, 0x334, v4")
    A("v_lshrrev_b32 v5, 16, v5")
    A("v_mul_u32_u24 v6, 80, v5")
    A("v_sub_u32 v6, v4, v6")
    A("v_lshlrev_b32 v10, 4, v0")
    A("v_mul_u32_u24 v7, 1280, v5")
    A("v_lshl_add_u32 v7, v6, 4, v7")
    AC = 112
    for e in range(16):
        A("v_mov_b32 v%d, 0" % (AC+e))
    A("s_waitcnt vmcnt(0)")
    A("s_barrier")
    A.stamp(5)
    for i in range(5):
        A("ds_read_b128 %s, v10 offset:%d" % (vr(G+4*i, 4), LG + 8192*i))
        A("ds_read_b128 %s, v10 offset:%d" % (vr(Uu+4*i, 4), LU + 8192*i - (0 if LU + 8192*i < 65536 else 0)) if LU + 8192*i < 65536 else
          "ds_read_b128 %s, v12 offset:%d" % (vr(Uu+4*i, 4), LU + 8192*i - 32768))
        if i == 0:
            A("v_add_u32 v12, 32768, v10")
    A("v_add_u32 v7, %d, v7" % LD)
    for i in range(6):
        A("ds_read_b128 %s, v7 offset:%d" % (vr(WD+4*i, 4), 7680*i))
    MB = 28; RI = 29
    ln_params(A, 24, 25, MB, RI, T+2)
    A("v_fma_f32 v13, -v%d, v11, v26" % MB)
    A("v_mul_f32 v13, v13, v%d" % RI)
    for i in range(5):
        x = XS+i
        A("v_lshlrev_b32 v%d, 16, v%d" % (x, x))
        A("v_sub_f32 v%d, v%d, v%d" % (x, x, MB))
        bf16r(A, x, x)
        A("v_mul_f32 v%d, v%d, v%d" % (x, RI, x))
        bf16r(A, x, x)
    A("s_waitcnt lgkmcnt(6)")
    for i in range(5):
        x = XS+i
        unpack8(A, T, G+4*i)
        for e in range(8):
            A("v_fmac_f32 v%d, v%d, v%d" % (AC+e, x, T+e))
        unpack8(A, T, Uu+4*i)
        for e in range(8):
            A("v_fmac_f32 v%d, v%d, v%d" % (AC+8+e, x, T+e))
    A("s_nop 1")
    for i in range(8):
        A("v_permlane32_swap_b32 v%d, v%d" % (AC+i, AC+8+i))
    A("s_nop 1")
    for i in range(8):
        A("v_add_f32 v%d, v%d, v%d" % (AC+i, AC+i, AC+8+i))
    A("s_nop 1")
    for i in range(4):
        A("v_permlane16_swap_b32 v%d, v%d" % (AC+i, AC+4+i))
    A("s_nop 1")
    for i in range(4):
        A("v_add_f32 v%d, v%d, v%d" % (AC+i, AC+i, AC+4+i))
    for ror in (8, 4):
        A("s_nop 1")
        for i in range(4):
            A("v_add_f32_dpp v%d, v%d, v%d row_ror:%d row_mask:0xf bank_mask:0xf" % (AC+4+i, AC+i, AC+i, ror))
        for i in range(4):
            A("v_mov_b32 v%d, v%d" % (AC+i, AC+4+i))
    A("v_lshrrev_b32 v%d, 5, v1" % T)
    A("v_lshlrev_b32 v%d, 7, v%d" % (T, T))
    A("v_bfe_u32 v%d, v1, 4, 1" % (T+1))
    A("v_lshl_add_u32 v%d, v%d, 4, v%d" % (T, T+1, T))
    A("v_lshl_add_u32 v%d, v9, 5, v%d" % (T, T))
    A("s_lshl_b32 s35, s3, 8")
    A("s_add_u32 s35, s35, %d" % LRED)
    A("v_add_u32 v%d, s35, v%d" % (T, T))
    A("ds_write_b128 v%d, %s" % (T, vr(AC, 4)))
    A("s_waitcnt lgkmcnt(0)")
    A("s_barrier")
    A("v_lshlrev_b32 v%d, 2, v1" % T)
    A("v_add_u32 v%d, %d, v%d" % (T, LRED, T))
    for w in range(8):
        A("ds_read_b32 v%d, v%d offset:%d" % (AC+w, T, 256*w))
    A("s_waitcnt lgkmcnt(0)")
    for st in (1, 2, 4):
        for w in range(0, 8, 2*st):
            A("v_add_f32 v%d, v%d, v%d" % (AC+w, AC+w, AC+w+st))
    bf16r(A, AC, AC)
    A("v_mov_b32 v%d, v%d" % (AC+1, AC))
    A("s_nop 1")
    A("v_permlane32_swap_b32 v%d, v%d" % (AC, AC+1))
    A("s_nop 1")
    g = AC; u = AC+1
    A("v_mul_f32 v%d, 0x%x, v%d" % (g+2, f32bits(-LOG2E), g))
    A("v_exp_f32 v%d, v%d" % (g+2, g+2))
    A("s_nop 0")
    A("v_add_f32 v%d, 1.0, v%d" % (g+2, g+2))
    A("v_rcp_f32 v%d, v%d" % (g+2, g+2))
    A("s_nop 0")
    A("v_mul_f32 v%d, v%d, v%d" % (g, g, g+2))
    bf16r(A, g, g)
    A("v_mul_f32 v%d, v%d, v%d" % (g, g, u))
    bf16r(A, g, g)
    A("v_lshlrev_b32 v%d, 2, v5" % T)
    for i in range(6):
        A("v_add_u32 v%d, %d, v%d" % (T+1+i, 24*i, T))
    for i in range(6):
        A("ds_bpermute_b32 v%d, v%d, v%d" % (XS+i, T+1+i, g))
    A("v_cmp_gt_u32 vcc, 2, v5")
    for e in range(8):
        A("v_mov_b32 v%d, 0" % (AC+4+e))
    A("s_waitcnt lgkmcnt(0)")
    A("v_cndmask_b32 v%d, 0, v%d, vcc" % (XS+5, XS+5))
    AY = AC+4
    for i in range(6):
        unpack8(A, T, WD+4*i)
        if i == 5:
            for e in range(8):
                A("v_cndmask_b32 v%d, 0, v%d, vcc" % (T+e, T+e))
        for e in range(8):
            A("v_fmac_f32 v%d, v%d, v%d" % (AY+e, XS+i, T+e))
    A("v_mul_u32_u24 v%d, 2560, v5" % T)
    A("v_lshl_add_u32 v%d, v6, 5, v%d" % (T, T))
    A("v_add_u32 v%d, %d, v%d" % (T, LY, T))
    A("ds_write_b128 v%d, %s" % (T, vr(AY, 4)))
    A("ds_write_b128 v%d, %s offset:16" % (T, vr(AY+4, 4)))
    A("s_waitcnt lgkmcnt(0)")
    A("s_barrier")
    A("v_lshlrev_b32 v%d, 2, v0" % T)
    A("v_add_u32 v%d, %d, v%d" % (T+2, LY, T))
    for rg in range(6):
        A("ds_read_b32 v%d, v%d offset:%d" % (AC+rg, T+2, rg*2560))
    A("s_cmp_ge_u32 s3, 2")
    Lna = A.newlabel(name+"_na")
    A("v_add_u32 v%d, 0x%x, v%d" % (T+1, WS_Y, T))
    A("s_cbranch_scc1 %s" % Lna)
    for rg in range(6):
        A("ds_read_b32 v%d, v%d offset:%d" % (AC+8+rg, T+2, rg*2560+2048))
    A("s_waitcnt lgkmcnt(0)")
    b = AC+8
    A("v_add_f32 v%d, v%d, v%d" % (b, b, b+1)); A("v_add_f32 v%d, v%d, v%d" % (b+2, b+2, b+3)); A("v_add_f32 v%d, v%d, v%d" % (b+4, b+4, b+5))
    A("v_add_f32 v%d, v%d, v%d" % (b, b, b+2)); A("v_add_f32 v%d, v%d, v%d" % (b, b, b+4))
    A("buffer_atomic_add_f32 v%d, v%d, s[8:11], 0 offen offset:2048" % (b, T+1))
    A.label(Lna)
    A("s_waitcnt lgkmcnt(0)")
    b = AC
    A("v_add_f32 v%d, v%d, v%d" % (b, b, b+1)); A("v_add_f32 v%d, v%d, v%d" % (b+2, b+2, b+3)); A("v_add_f32 v%d, v%d, v%d" % (b+4, b+4, b+5))
    A("v_add_f32 v%d, v%d, v%d" % (b, b, b+2)); A("v_add_f32 v%d, v%d, v%d" % (b, b, b+4))
    A("buffer_atomic_add_f32 v%d, v%d, s[8:11], 0 offen" % (b, T+1))
    A.stamp(3)
    A("s_waitcnt vmcnt(0)")
    A.stamp(6)
    A("s_barrier")
    A("s_cmp_lg_u32 s3, 0")
    A("s_cbranch_scc1 %s" % L_end)
    A("v_mov_b32 v%d, 1" % T)
    A("v_mov_b32 v%d, 0" % (T+1))
    A("s_mov_b64 exec, 1")
    A("buffer_atomic_add v%d, v%d, s[56:59], 0 offen sc0 sc1" % (T, T+1))
    A("s_mov_b64 exec, -1")
    A("v_lshlrev_b32 v%d, 2, v1" % (T+4))
    A("v_add_u32 v%d, s37, v%d" % (T+4, T+4))
    A("v_add_u32 v%d, 0x%x, v%d" % (T+5, WS_H, T+4))
    for i in range(5):
        A("buffer_load_dword v%d, v%d, s[8:11], 0 offen offset:%d" % (60+i, T+5, 256*i))
    bf16r(A, 13, 13)
    A("v_mul_f32 v13, 0x%x, v13" % f32bits(-LOG2E))
    A("v_exp_f32 v13, v13")
    A("s_nop 0")
    A("v_add_f32 v13, 1.0, v13")
    A("v_rcp_f32 v13, v13")
    A("s_nop 0")
    bf16r(A, 13, 13)
    A("s_waitcnt vmcnt(5)")
    A.stamp(7)
    A("v_readfirstlane_b32 s35, v%d" % T)
    A("s_nop 3")
    A("s_cmp_lg_u32 s35, %d" % (NF-1))
    A("s_cbranch_scc1 %s" % L_end)
    A("buffer_inv sc1")
    A("s_waitcnt vmcnt(0)")
    A("v_lshlrev_b32 v%d, 3, v1" % T)
    A("v_add_u32 v%d, 0x%x, v%d" % (T, WS_Y, T))
    for i in range(5):
        A("buffer_load_dwordx2 %s, v%d, s[8:11], 0 offen offset:%d sc0 sc1" % (vr(40+2*i, 2), T, 512*i))
    A("s_waitcnt vmcnt(0)")
    for i in range(5):
        A("v_lshlrev_b32 v%d, 16, v%d" % (T+6, 60+i))
        A("v_and_b32 v%d, 0xffff0000, v%d" % (T+7, 60+i))
        for e in range(2):
            y = 40+2*i+e; h = T+6+e; t = T+8
            bf16r(A, y, y)
            A("v_mul_f32 v%d, v13, v%d" % (y, y))
            bf16r(A, y, y)
            A("v_sub_f32 v%d, v%d, v%d" % (t, h, MB))
            bf16r(A, t, t)
            A("v_mul_f32 v%d, v%d, v%d" % (t, RI, t))
            bf16r(A, t, t)
            A("v_add_f32 v%d, v%d, v%d" % (t, t, y))
            bf16r(A, t, t)
            A("v_add_f32 v%d, v%d, v%d" % (y, h, t))
        A("v_cvt_pk_bf16_f32 v%d, v%d, v%d" % (70+i, 40+2*i, 41+2*i))
        A("buffer_store_dword v%d, v%d, s[12:15], 0 offen offset:%d" % (70+i, T+4, 256*i))
    A.label(L_end)
    A.stamp(4)
    A.stamp(1)
    A.dump_stamps(8, WS_DBG + dbgoff)
    A.label(name + "_exit")
    A("s_endpgm")
    return kernel_header(name) + A.text() + kernel_desc(name, 256 if stamps else 128, 102 if stamps else 64)
```
